```python
import torch

def _softmax(x, axis=-1):
    return torch.softmax(x, dim=axis)
def _gelu(x):
    return torch.nn.functional.gelu(x, approximate="tanh")
def _silu(x):
    return torch.nn.functional.silu(x)
def _sigmoid(x):
    return torch.sigmoid(x)
def _layernorm(x, axis=-1, eps=1e-5):
    m = x.mean(dim=axis, keepdim=True)
    v = x.var(dim=axis, keepdim=True, unbiased=False)
    return (x - m) / torch.sqrt(v + eps)
def _scatter_add(tgt, idx, src, axis=0):
    return tgt.clone().index_add_(axis, idx, src)
def _segment_sum(src, seg, n):
    out = torch.zeros((n,) + src.shape[1:], dtype=src.dtype)
    return out.index_add_(0, seg, src)
def _pad(x, pw):
    flat = tuple(v for pair in reversed(pw) for v in pair)
    return torch.nn.functional.pad(x, flat)

kernel_name = 'recurrent_scan__gqa_block_cached__mixer_channel_mlp__decode'

def setup_inputs():

    _w = (lambda a: (lambda t: t.to(torch.bfloat16) if t.is_floating_point() else t)(torch.as_tensor(a)))
    def _A_setup():
        B, Sq, D = 2, 1, 512
        Hq, Hkv, Sk, Dh = 32, 8, 8192, 128
        assert Hq % Hkv == 0, (Hq, Hkv)
        return {
            "x": _w((lambda *s: torch.randn(*s, dtype=torch.bfloat16) * 0.1)(B, Sq, D)),
            "k_cache": _w((lambda *s: torch.randn(*s, dtype=torch.bfloat16) * 0.8)(B, Hkv, Sk, Dh)),
            "v_cache": _w((lambda *s: torch.randn(*s, dtype=torch.bfloat16) * 3.2)(B, Hkv, Sk, Dh)),
            "wq": _w((lambda *s: torch.randn(*s, dtype=torch.bfloat16) * 0.8)(D, Hq * Dh) * (D ** -0.5)),
            "wo": _w((lambda *s: torch.randn(*s, dtype=torch.bfloat16) * 3.2)(Hq * Dh, D) * ((Hq * Dh) ** -0.5)),
        }
    _A_in = _A_setup()

    def _B_setup():
        B, S, D, F = 2, 1, 512, 1792
        return {
            "x": _w((lambda *s: torch.randn(*s, dtype=torch.bfloat16) * 0.1)(B, S, D)),
            "w1": _w((lambda *s: torch.randn(*s, dtype=torch.bfloat16) * 3.2)(D, F) * (D ** -0.5)),
            "b1": _w((lambda *s: torch.randn(*s, dtype=torch.bfloat16) * 3.2)(F)),
            "w2": _w((lambda *s: torch.randn(*s, dtype=torch.bfloat16) * 3.2)(F, D) * (F ** -0.5)),
            "b2": _w((lambda *s: torch.randn(*s, dtype=torch.bfloat16) * 3.2)(D)),
        }
    _B_in = _B_setup()

    return {
        "A_x": _A_in["x"],
        "A_k_cache": _A_in["k_cache"],
        "A_v_cache": _A_in["v_cache"],
        "A_wq": _A_in["wq"],
        "A_wo": _A_in["wo"],
        "B_x": _B_in["x"],
        "B_w1": _B_in["w1"],
        "B_b1": _B_in["b1"],
        "B_w2": _B_in["w2"],
        "B_b2": _B_in["b2"],
    }

def reference(A_x, A_k_cache, A_v_cache, A_wq, A_wo, B_x, B_w1, B_b1, B_w2, B_b2):
    def _A_ref(x, k_cache, v_cache, wq, wo):
        B, Sq, D = x.shape
        Hq, Dh = 32, 128
        Hkv = k_cache.shape[1]
        rep = Hq // Hkv
        q = (lambda x, *d: x.permute(*d))((x @ wq).reshape(B, Sq, Hq, Dh), 0, 2, 1, 3)
        k = (lambda x, n, axis: torch.repeat_interleave(x, n, dim=axis))(k_cache, rep, axis=1)
        v = (lambda x, n, axis: torch.repeat_interleave(x, n, dim=axis))(v_cache, rep, axis=1)
        scores = torch.einsum("bhqd,bhkd->bhqk", q, k) * (Dh ** -0.5)
        p = _softmax(scores, axis=-1)
        o = torch.einsum("bhqk,bhkd->bhqd", p, v)
        return (lambda x, *d: x.permute(*d))(o, 0, 2, 1, 3).reshape(B, Sq, Hq * Dh) @ wo

    def _B_ref(x, w1, b1, w2, b2):
        y = _layernorm(x, axis=-1)
        h = _gelu(torch.einsum("bsd,df->bsf", y, w1) + b1)
        return torch.einsum("bsf,fd->bsd", h, w2) + b2

    x = A_x
    xn = _layernorm(x, axis=-1)
    s = _A_ref(xn, A_k_cache, A_v_cache, A_wq, A_wo)
    g = _silu(_B_ref(xn, B_w1, B_b1, B_w2, B_b2))
    return x + s * g
```

```python
KNAME = "recurrent_scan__gqa_block_cached__mixer_channel_mlp__decode"
HDR = open("cdna_kernels/" + KNAME + ".s.ref").read().split("; Override launch")[0]

def wrap(body, grid, block, lds, vgpr, sgpr=102, accum=None):
    if accum is None:
        accum = (vgpr + 3) // 4 * 4
        accum = min(accum, 256)
    return (HDR + f"; @launch grid=({grid},1,1) block=({block},1,1) lds={lds}\n"
        '.amdgcn_target "amdgcn-amd-amdhsa--gfx950"\n.text\n'
        f".globl {KNAME}_kernel\n.p2align 8\n.type {KNAME}_kernel,@function\n{KNAME}_kernel:\n"
        + body +
        f"""
.section .rodata,"a"
.p2align 6
.amdhsa_kernel {KNAME}_kernel
  .amdhsa_next_free_vgpr {vgpr}
  .amdhsa_next_free_sgpr {sgpr}
  .amdhsa_accum_offset {accum}
  .amdhsa_group_segment_fixed_size 0
  .amdhsa_kernarg_size 104
  .amdhsa_user_sgpr_count 2
  .amdhsa_user_sgpr_kernarg_segment_ptr 1
  .amdhsa_system_sgpr_workgroup_id_x 1
  .amdhsa_float_denorm_mode_32 3
  .amdhsa_float_denorm_mode_16_64 3
.end_amdhsa_kernel
""")
```

```python
import sys
from common import *

QBUF = 0
OSLOT = 2176
OBUF = 0x10000
SBUF = 0x100000
MBUF = 0x200000
STAMP = 0x8000000
L_Q = 131072
L_M = L_Q + 1024
L_L = L_M + 128
L_H = L_L + 128
LDS_BYTES = L_H + 128
LOG2E = 0x3fb8aa3b
SCALE = 0x3db504f3

class G:
    def __init__(self, stamps=False, nt="nt", wnt="nt", spoll=False):
        self.L = []; self.stamps = stamps; self.nt = nt; self.wnt = wnt; self.spoll = spoll
        self.uid = 0
    def A(self, s):
        for l in s.split("\n"):
            self.L.append("  " + l.strip() if not l.strip().endswith(":") else l.strip())
    def nop(self, n):
        while n > 0:
            k = min(n, 16); self.A(f"s_nop {k-1}"); n -= k
    def stamp(self, j):
        if self.stamps: self.A(f"s_memrealtime s[{70+2*j}:{71+2*j}]")
    def lab(self, p):
        self.uid += 1; return f"L_{p}{self.uid}"
    def srd(self, d, lo, size):
        self.A(f"s_mov_b32 s{d}, s{lo}\ns_mov_b32 s{d+1}, s{lo+1}\ns_mov_b32 s{d+2}, {size}\ns_mov_b32 s{d+3}, 0x20000")
    def dpp(self, op, v, ctl):
        self.A(f"v_{op}_f32_dpp v{v}, v{v}, v{v} {ctl} row_mask:0xf bank_mask:0xf")
    def red_multi(self, op, regs, ctls):
        for c in ctls:
            if len(regs) < 3: self.nop(3 - len(regs) if len(regs) > 1 else 2)
            for v in regs: self.dpp(op, v, c)
    def red_swap(self, op, regs, tmps, which):
        for w in which:
            for v, t in zip(regs, tmps): self.A(f"v_mov_b32 v{t}, v{v}")
            self.nop(2)
            for v, t in zip(regs, tmps): self.A(f"v_permlane{w}_swap_b32 v{v}, v{t}")
            self.nop(1)
            for v, t in zip(regs, tmps): self.A(f"v_{op}_f32 v{v}, v{v}, v{t}")
    def rbf(self, d, s):
        self.A(f"v_cvt_pk_bf16_f32 v{d}, v{s}, v{s}\nv_lshlrev_b32 v{d}, 16, v{d}")
    def rbf2(self, d0, d1, s0, s1):
        self.A(f"v_cvt_pk_bf16_f32 v{d1}, v{s0}, v{s1}\nv_lshlrev_b32 v{d0}, 16, v{d1}\nv_and_b32 v{d1}, 0xffff0000, v{d1}")

X1 = "quad_perm:[1,0,3,2]"; X2 = "quad_perm:[2,3,0,1]"; HM = "row_half_mirror"; RM = "row_mirror"

def perms(g, dst, src, kp):
    a = src + 4 * (2 * kp); b = src + 4 * (2 * kp + 1)
    for dp in range(4):
        g.A(f"v_perm_b32 v{dst+4*(2*dp)+kp}, v{b+dp}, v{a+dp}, s60")
        g.A(f"v_perm_b32 v{dst+4*(2*dp+1)+kp}, v{b+dp}, v{a+dp}, s61")

def layernorm(g, f, t):
    A = g.A
    s, s2, mean, var = t, t + 1, t + 2, t + 3
    A(f"v_add_f32 v{s}, v{f}, v{f+1}")
    for i in range(2, 16): A(f"v_add_f32 v{s}, v{s}, v{f+i}")
    g.red_multi("add", [s], [X1, X2, HM])
    g.red_swap("add", [s], [s2], [16, 32])
    A(f"v_mul_f32 v{mean}, 0x3b000000, v{s}")
    A(f"v_sub_f32 v{s2}, v{f}, v{mean}\nv_mul_f32 v{var}, v{s2}, v{s2}")
    for i in range(1, 16):
        A(f"v_sub_f32 v{s2}, v{f+i}, v{mean}\nv_fmac_f32 v{var}, v{s2}, v{s2}")
    g.red_multi("add", [var], [X1, X2, HM])
    g.red_swap("add", [var], [s2], [16, 32])
    A(f"v_mul_f32 v{var}, 0x3b000000, v{var}")
    g.rbf2(mean, var, mean, var)
    A(f"v_add_f32 v{var}, 0x3727c5ac, v{var}")
    g.rbf(var, var)
    A(f"v_sqrt_f32 v{var}, v{var}")
    g.nop(1)
    g.rbf(var, var)
    A(f"v_rcp_f32 v{s}, v{var}")
    for i in range(16): A(f"v_sub_f32 v{f+i}, v{f+i}, v{mean}")
    for i in range(0, 16, 2): g.rbf2(f + i, f + i + 1, f + i, f + i + 1)
    for i in range(16):
        A(f"v_mul_f32 v{s2}, v{f+i}, v{s}")
        A(f"v_fma_f32 v{f+i}, -v{s2}, v{var}, v{f+i}")
        A(f"v_fma_f32 v{f+i}, v{f+i}, v{s}, v{s2}")
    for i in range(0, 16, 2): g.rbf2(f + i, f + i + 1, f + i, f + i + 1)

def spin_guard(g, cnt, lab_loop, lab_out, sleep=1):
    g.A(f"s_cmp_eq_u32 s{cnt}, 0\ns_cbranch_scc1 {lab_out}\ns_sub_u32 s{cnt}, s{cnt}, 1\ns_sleep {sleep}\ns_branch {lab_loop}")

def gen(stamps=False, nt="nt", wnt="nt", spoll=False):
    g = G(stamps, nt, wnt, spoll); A = g.A
    if stamps:
        for j in range(14): A(f"s_mov_b64 s[{70+2*j}:{71+2*j}], 0")
    g.stamp(0)
    A("s_cmp_ge_u32 s2, 256\ns_cbranch_scc1 L_end")
    A("s_load_dwordx16 s[4:19], s[0:1], 0")
    A("s_load_dwordx8 s[20:27], s[0:1], 64")
    A("s_load_dwordx2 s[28:29], s[0:1], 96")
    A("v_lshrrev_b32 v1, 6, v0\nv_and_b32 v0, 63, v0")
    A("v_readfirstlane_b32 s3, v1")
    A("s_and_b32 s30, s2, 7\ns_lshr_b32 s31, s2, 3")
    A("s_mov_b32 s60, 0x05040100\ns_mov_b32 s61, 0x07060302")
    A("s_mov_b32 s62, 0x40000")
    A("v_lshrrev_b32 v6, 4, v0\nv_and_b32 v7, 15, v0")
    A("s_cmp_ge_u32 s3, 8\ns_cbranch_scc1 L_svc")
    A("s_setprio 2")
    A("s_lshr_b32 s44, s31, 4\ns_lshl_b32 s44, s44, 3\ns_add_u32 s44, s44, s30\ns_lshl_b32 s44, s44, 21")
    A("s_and_b32 s45, s31, 15\ns_lshl_b32 s45, s45, 17\ns_add_u32 s44, s44, s45")
    A("s_lshl_b32 s45, s3, 14\ns_add_u32 s44, s44, s45")
    A("v_lshlrev_b32 v1, 2, v6\nv_xor_b32 v1, v1, v7\nv_lshlrev_b32 v1, 4, v1\nv_lshl_add_u32 v1, v6, 8, v1")
    A("v_xor_b32 v2, 16, v1\nv_xor_b32 v3, 32, v1\nv_xor_b32 v4, 48, v1\nv_lshlrev_b32 v5, 4, v0")
    A("s_mov_b32 m0, s45\ns_mov_b32 s46, s44")
    A("s_waitcnt lgkmcnt(0)")
    g.stamp(1)
    g.srd(32, 6, "0x2000000")
    for p in range(16):
        if p and p % 4 == 0:
            A(f"s_add_u32 m0, s45, {p*1024}\ns_add_u32 s46, s44, {p*1024}")
        A(f"buffer_load_dwordx4 v{1+p%4}, s[32:35], s46 offen offset:{(p%4)*1024} {nt} lds")
    g.srd(36, 8, "0x2000000")
    A("s_setprio 0")
    for p in range(16):
        if p % 4 == 0: A(f"s_add_u32 s46, s44, {p*1024}")
        A(f"buffer_load_dwordx4 v[{64+4*p}:{67+4*p}], v5, s[36:39], s46 offen offset:{(p%4)*1024} {nt}")
    A("s_setprio 1")
    g.stamp(2)
    g.srd(40, 28, "0x10000000")
    A("v_and_b32 v1, 3, v7\nv_lshlrev_b32 v1, 2, v1\nv_lshrrev_b32 v2, 2, v7\nv_add_u32 v1, v1, v2\nv_lshlrev_b32 v1, 8, v1")
    A("v_xor_b32 v2, v6, v7\nv_lshl_add_u32 v1, v2, 4, v1\nv_add_u32 v1, s45, v1")
    A("v_xor_b32 v2, 64, v1\nv_xor_b32 v3, 0x80, v1\nv_xor_b32 v4, 0xc0, v1")
    A(f"v_and_b32 v5, 3, v7\nv_lshlrev_b32 v5, 8, v5\nv_lshl_add_u32 v5, v6, 4, v5\nv_add_u32 v5, {L_Q}, v5")
    A("s_barrier")
    g.stamp(3)
    for j in range(4): A(f"ds_read_b128 v[{16+4*j}:{19+4*j}], v5 offset:{j*64}")
    A("s_waitcnt vmcnt(16) lgkmcnt(0)")
    g.stamp(4)
    KF = [32, 48, 128, 144]; S = [8, 12, 160, 164]
    for T in range(2):
        for j in range(4): A(f"ds_read_b128 v[{KF[T]+4*j}:{KF[T]+4*j+3}], v{1+j} offset:{T*4096}")
    for T in range(4):
        if T < 2:
            for j in range(4): A(f"ds_read_b128 v[{KF[T+2]+4*j}:{KF[T+2]+4*j+3}], v{1+j} offset:{(T+2)*4096}") if not stamps or True else None
        if stamps: A("s_waitcnt lgkmcnt(0)")
        else: A(f"s_waitcnt lgkmcnt({[8,8,4,0][T]})")
        for j in range(4):
            c = "0" if j == 0 else f"v[{S[T]}:{S[T]+3}]"
            A(f"v_mfma_f32_16x16x32_bf16 v[{S[T]}:{S[T]+3}], v[{KF[T]+4*j}:{KF[T]+4*j+3}], v[{16+4*j}:{19+4*j}], {c}")
    A(f"s_mov_b32 s47, {SCALE}\ns_mov_b32 s48, {LOG2E}")
    g.nop(6)
    sv = [S[T] + r for T in range(4) for r in range(4)]
    for i in range(0, 16, 2):
        a, b = sv[i], sv[i + 1]
        g.rbf2(a, b, a, b)
        A(f"v_mul_f32 v{a}, s47, v{a}\nv_mul_f32 v{b}, s47, v{b}")
        g.rbf2(a, b, a, b)
    A(f"v_max3_f32 v24, v{sv[0]}, v{sv[1]}, v{sv[2]}")
    for i in range(3, 15, 2): A(f"v_max3_f32 v24, v24, v{sv[i]}, v{sv[i+1]}")
    A(f"v_max_f32 v24, v24, v{sv[15]}")
    g.red_swap("max", [24], [25], [16, 32])
    A(f"v_and_b32 v26, 3, v0\nv_lshlrev_b32 v26, 5, v26\nv_add_u32 v26, {L_M}, v26")
    A("s_lshl_b32 s49, s3, 2\nv_add_u32 v27, s49, v26")
    A("ds_write_b32 v27, v24\ns_waitcnt lgkmcnt(0)\ns_barrier")
    g.stamp(5)
    A("ds_read_b128 v[32:35], v26\nds_read_b128 v[36:39], v26 offset:16\ns_waitcnt lgkmcnt(0)")
    A("v_max3_f32 v24, v32, v33, v34\nv_max3_f32 v24, v24, v35, v36\nv_max3_f32 v24, v24, v37, v38\nv_max_f32 v24, v24, v39")
    A("v_mul_f32 v24, s48, v24")
    for v in sv: A(f"v_fma_f32 v{v}, v{v}, s48, -v24")
    for v in sv: A(f"v_exp_f32 v{v}, v{v}")
    g.nop(1)
    A(f"v_add_f32 v25, v{sv[0]}, v{sv[1]}")
    for i in range(2, 16): A(f"v_add_f32 v25, v25, v{sv[i]}")
    for i in range(8): A(f"v_cvt_pk_bf16_f32 v{16+i}, v{sv[2*i]}, v{sv[2*i+1]}")
    g.red_swap("add", [25], [28], [16, 32])
    A(f"ds_write_b32 v27, v25 offset:{L_L-L_M}")
    for T in range(2):
        for kp in range(4):
            A(f"s_waitcnt vmcnt({14 - 8*T - 2*kp})")
            if T == 1 and kp == 3: g.stamp(6)
            perms(g, 128, 64 + 32 * T, kp)
        g.nop(2)
        for e in range(8):
            c = "0" if T == 0 else f"v[{32+4*e}:{35+4*e}]"
            A(f"v_mfma_f32_16x16x32_bf16 v[{32+4*e}:{35+4*e}], v[{16+4*T}:{19+4*T}], v[{128+4*e}:{131+4*e}], {c}")
    A("v_lshlrev_b32 v1, 5, v7\nv_add_u32 v1, s45, v1\nv_add_u32 v2, 1024, v1")
    A("s_mov_b64 exec, 0xffff")
    g.nop(4)
    for e in range(0, 8, 2):
        for r in range(4):
            A(f"ds_write2_b32 v{1 + r//2}, v{32+4*e+r}, v{32+4*(e+1)+r} offset0:{(r%2)*128+e} offset1:{(r%2)*128+e+1}")
    A("s_mov_b64 exec, -1")
    A("s_lshl_b32 s49, s3, 8\nv_lshlrev_b32 v1, 2, v0\nv_add_u32 v1, s49, v1\nv_add_u32 v2, 0x10000, v1")
    A(f"s_lshl_b32 s50, s30, 5\ns_add_u32 s50, s50, s31\ns_mul_i32 s50, s50, {OSLOT}\ns_add_u32 s50, s50, {OBUF}")
    A("s_waitcnt lgkmcnt(0)\ns_barrier")
    g.stamp(7)
    A("ds_read2st64_b32 v[8:9], v1 offset0:0 offset1:64\nds_read2st64_b32 v[10:11], v1 offset0:128 offset1:192")
    A("ds_read2st64_b32 v[12:13], v2 offset0:0 offset1:64\nds_read2st64_b32 v[14:15], v2 offset0:128 offset1:192")
    A(f"ds_read_b128 v[32:35], v26 offset:{L_L-L_M}\nds_read_b128 v[36:39], v26 offset:{L_L-L_M+16}")
    A("s_waitcnt lgkmcnt(0)")
    A("v_add_f32 v8, v8, v9\nv_add_f32 v10, v10, v11\nv_add_f32 v12, v12, v13\nv_add_f32 v14, v14, v15")
    A("v_add_f32 v8, v8, v10\nv_add_f32 v12, v12, v14\nv_add_f32 v8, v8, v12\nv_min_u32 v8, -2, v8")
    A("buffer_store_dword v8, v1, s[40:43], s50 offen sc1")
    A("s_cmp_lg_u32 s3, 0\ns_cbranch_scc1 L_fin")
    A("v_add_f32 v32, v32, v33\nv_add_f32 v34, v34, v35\nv_add_f32 v36, v36, v37\nv_add_f32 v38, v38, v39")
    A("v_add_f32 v32, v32, v34\nv_add_f32 v36, v36, v38\nv_add_f32 v25, v32, v36")
    A("v_min_u32 v24, -2, v24\nv_min_u32 v25, -2, v25\nv_lshlrev_b32 v1, 3, v0")
    A("s_mov_b64 exec, 0xf")
    A("buffer_store_dwordx2 v[24:25], v1, s[40:43], s50 offen offset:2048 sc1")
    A("s_mov_b64 exec, -1")
    A("s_branch L_fin")

    A("L_svc:")
    A("s_setprio 3")
    A("s_waitcnt lgkmcnt(0)")
    g.stamp(1)
    g.srd(40, 28, "0x10000000")
    g.srd(32, 4, "2048")
    A("s_cmp_eq_u32 s3, 10\ns_cbranch_scc1 L_w10")
    A("s_lshr_b32 s44, s31, 1")
    A("s_bitcmp1_b32 s31, 0\ns_cbranch_scc1 L_mtype")
    g.srd(36, 10, "0x400000")
    A("s_mov_b32 s45, 8192\ns_lshl_b32 s46, s30, 10\ns_lshl_b32 s47, s44, 6\ns_add_u32 s46, s46, s47")
    A("s_sub_u32 s47, s3, 8\ns_lshl_b32 s47, s47, 5\ns_add_u32 s46, s46, s47\ns_mov_b32 s52, 0")
    A("s_branch L_gemv")
    A("L_mtype:")
    A("s_cmp_ge_u32 s44, 14\ns_cbranch_scc1 L_nojob")
    A("s_mul_i32 s48, s30, 14\ns_add_u32 s48, s48, s44")
    A("s_cmp_eq_u32 s3, 9\ns_cbranch_scc1 L_w2job")
    g.srd(36, 16, str(512 * 1792 * 2))
    A("s_mov_b32 s45, 3584\ns_lshl_b32 s46, s48, 5\ns_mov_b32 s52, 1")
    A("L_gemv:")
    A("v_lshrrev_b32 v1, 3, v7\nv_lshlrev_b32 v1, 10, v1\nv_lshl_add_u32 v1, v6, 7, v1\nv_and_b32 v2, 7, v0\nv_lshl_add_u32 v1, v2, 4, v1")
    A("buffer_load_dwordx4 v[8:11], v1, s[32:35], 0 offen\nbuffer_load_dwordx4 v[12:15], v1, s[32:35], 0 offen offset:512")
    A("v_lshrrev_b32 v2, 1, v0\ns_lshl_b32 s47, s45, 3\nv_mul_lo_u32 v2, v2, s47\nv_and_b32 v3, 1, v0\nv_lshl_add_u32 v2, v3, 4, v2")
    A("s_lshl_b32 s49, s45, 8\ns_add_u32 s49, s49, s46")
    for T in range(2):
        for kk in range(8):
            sr = 46 if T == 0 else 49
            A(f"buffer_load_dwordx4 v[{64+32*T+4*kk}:{67+32*T+4*kk}], v2, s[36:39], s{sr} offen {wnt}")
            if kk < 7: A(f"s_add_u32 s{sr}, s{sr}, s45")
    A("s_cmp_eq_u32 s52, 1\ns_cbranch_scc1 L_m_pre")
    A("s_lshl_b32 s47, s44, 1\ns_add_u32 s47, s47, s3\ns_sub_u32 s47, s47, 8")
    A("v_mov_b32 v16, -1\nv_mov_b32 v17, -1\nv_mov_b32 v18, -1\nv_mov_b32 v19, -1\nv_lshlrev_b32 v3, 4, v0")
    A(f"s_lshl_b32 s50, s30, 5\ns_add_u32 s50, s50, s47\ns_mul_i32 s51, s50, {OSLOT}\ns_add_u32 s51, s51, {OBUF}")
    A("buffer_store_dwordx4 v[16:19], v3, s[40:43], s51 offen sc1\nbuffer_store_dwordx4 v[16:19], v3, s[40:43], s51 offen offset:1024 sc1")
    A("s_mov_b64 exec, 0xff\nbuffer_store_dwordx4 v[16:19], v3, s[40:43], s51 offen offset:2048 sc1\ns_mov_b64 exec, -1")
    A(f"s_lshl_b32 s51, s50, 11\ns_add_u32 s51, s51, {SBUF}")
    A("buffer_store_dwordx4 v[16:19], v3, s[40:43], s51 offen sc1\nbuffer_store_dwordx4 v[16:19], v3, s[40:43], s51 offen offset:1024 sc1")
    A("s_cmp_ge_u32 s47, 28\ns_cbranch_scc1 L_q_noM")
    A(f"s_mul_i32 s51, s30, 28\ns_add_u32 s51, s51, s47\ns_lshl_b32 s51, s51, 11\ns_add_u32 s51, s51, {MBUF}")
    A("buffer_store_dwordx4 v[16:19], v3, s[40:43], s51 offen sc1\nbuffer_store_dwordx4 v[16:19], v3, s[40:43], s51 offen offset:1024 sc1")
    A("s_waitcnt vmcnt(23)\ns_branch L_ln")
    A("L_q_noM:")
    A("s_waitcnt vmcnt(21)\ns_branch L_ln")
    A("L_m_pre:")
    g.srd(56, 18, "3584")
    A("v_lshlrev_b32 v3, 4, v3\ns_lshl_b32 s47, s48, 5")
    A("buffer_load_dwordx4 v[160:163], v3, s[56:59], s47 offen")
    A("s_waitcnt vmcnt(17)")
    A("L_ln:")
    g.stamp(2)
    for i in range(8):
        A(f"v_lshlrev_b32 v{32+2*i}, 16, v{8+i}\nv_and_b32 v{33+2*i}, 0xffff0000, v{8+i}")
    A("L_ln_again:")
    layernorm(g, 32, 20)
    A("s_cmp_eq_u32 s52, 1\ns_mov_b32 s52, 2\ns_cbranch_scc1 L_ln_again")
    for i in range(8): A(f"v_perm_b32 v{8+i}, v{33+2*i}, v{32+2*i}, s61")
    g.stamp(3)
    A("s_waitcnt vmcnt(0)")
    g.stamp(4)
    for T in range(2):
        for kp in range(4): perms(g, 128, 64 + 32 * T, kp)
        g.nop(2)
        for e in range(8):
            c = "0" if T == 0 else f"v[{32+4*e}:{35+4*e}]"
            A(f"v_mfma_f32_16x16x32_bf16 v[{32+4*e}:{35+4*e}], v[{8+4*T}:{11+4*T}], v[{128+4*e}:{131+4*e}], {c}")
    def mask(f):
        m = 0
        for l in range(64):
            if f(l): m |= 1 << l
        return m
    m_b1 = mask(lambda l: (l >> 1) & 1); m_b2 = mask(lambda l: (l >> 2) & 1); m_ok = mask(lambda l: ((l >> 3) & 1) == ((l >> 4) & 1))
    for (s, m) in ((64, m_b1), (66, m_b2), (68, m_ok)):
        A(f"s_mov_b32 s{s}, {m & 0xffffffff:#x}\ns_mov_b32 s{s+1}, {m >> 32:#x}")
    g.nop(2)
    for e in range(8):
        d = 32 + 4 * e
        A(f"v_cndmask_b32 v{d}, v{d}, v{d+1}, s[64:65]\nv_cndmask_b32 v{d+2}, v{d+2}, v{d+3}, s[64:65]")
        A(f"v_cndmask_b32 v{d}, v{d}, v{d+2}, s[66:67]\nv_cndmask_b32 v{16+e}, 0, v{d}, s[68:69]")
    R = list(range(16, 24))
    g.red_multi("add", R, ["row_ror:2", "row_ror:4", "row_ror:8"])
    g.red_swap("add", R, list(range(24, 32)), [16])
    A("s_bitcmp1_b32 s31, 0\ns_cbranch_scc1 L_m_post")
    for i in range(4): A(f"v_cvt_pk_bf16_f32 v{24+i}, v{16+2*i}, v{17+2*i}")
    A("v_lshrrev_b32 v1, 5, v0\nv_lshlrev_b32 v1, 10, v1\nv_and_b32 v2, 1, v0\nv_lshl_add_u32 v1, v2, 4, v1")
    A(f"s_lshl_b32 s50, s30, 11\ns_lshl_b32 s51, s44, 6\ns_add_u32 s50, s50, s51\ns_sub_u32 s51, s3, 8\ns_lshl_b32 s51, s51, 5\ns_add_u32 s50, s50, s51")
    g.srd(56, 26, "256")
    A("s_mov_b32 exec_lo, 3\ns_mov_b32 exec_hi, 3")
    A(f"buffer_store_dwordx4 v[24:27], v1, s[40:43], s50 offen sc1")
    A("s_mov_b64 exec, 1\nv_mov_b32 v1, 1\nv_mov_b32 v2, 0\ns_lshl_b32 s51, s30, 5")
    g.stamp(5)
    A("s_waitcnt vmcnt(0)")
    g.stamp(6)
    A("buffer_atomic_add v1, v2, s[56:59], s51 offen sc1")
    A("s_mov_b64 exec, -1")
    A("s_branch L_nojob")
    A("L_m_post:")
    for i in range(4):
        g.rbf2(16 + 2 * i, 17 + 2 * i, 16 + 2 * i, 17 + 2 * i)
        A(f"v_lshlrev_b32 v24, 16, v{160+i}\nv_and_b32 v25, 0xffff0000, v{160+i}")
        A(f"v_add_f32 v{16+2*i}, v{16+2*i}, v24\nv_add_f32 v{17+2*i}, v{17+2*i}, v25")
        g.rbf2(16 + 2 * i, 17 + 2 * i, 16 + 2 * i, 17 + 2 * i)
    import struct, math
    f2u = lambda x: struct.unpack("<I", struct.pack("<f", x))[0]
    c1 = -2.0 * math.sqrt(2.0 / math.pi) * math.log2(math.e)
    A(f"s_mov_b32 s50, {f2u(c1):#x}\ns_mov_b32 s51, {f2u(0.044715):#x}")
    for i in range(8):
        A(f"v_mul_f32 v{24+i}, v{16+i}, v{16+i}\nv_mul_f32 v{24+i}, s51, v{24+i}\nv_fma_f32 v{24+i}, v{24+i}, v{16+i}, v{16+i}\nv_mul_f32 v{24+i}, s50, v{24+i}")
    for i in range(8): A(f"v_exp_f32 v{24+i}, v{24+i}")
    g.nop(1)
    for i in range(8): A(f"v_add_f32 v{24+i}, 1.0, v{24+i}")
    for i in range(8): A(f"v_rcp_f32 v{24+i}, v{24+i}")
    g.nop(1)
    for i in range(8): A(f"v_mul_f32 v{16+i}, v{16+i}, v{24+i}")
    for i in range(4): A(f"v_cvt_pk_bf16_f32 v{24+i}, v{16+2*i}, v{17+2*i}")
    A(f"v_lshrrev_b32 v1, 5, v0\nv_lshlrev_b32 v1, 5, v1\nv_and_b32 v2, 1, v0\nv_lshl_add_u32 v1, v2, 4, v1\nv_add_u32 v1, {L_H}, v1")
    A("ds_write_b128 v1, v[24:27]\ns_waitcnt lgkmcnt(0)")
    g.stamp(5)
    A("L_nojob:")
    A("s_barrier\ns_barrier")
    A("s_branch L_wo")
    A("L_w2job:")
    g.srd(36, 20, str(512 * 1792 * 2))
    A("v_lshlrev_b32 v2, 4, v0\ns_lshl_b32 s46, s48, 14")
    for f in range(16):
        if f and f % 4 == 0: A("s_add_u32 s46, s46, 4096")
        A(f"buffer_load_dwordx4 v[{64+4*f}:{67+4*f}], v2, s[36:39], s46 offen offset:{(f%4)*1024} {wnt}")
    A(f"v_mov_b32 v1, {L_H}")
    A("s_barrier\ns_barrier")
    for i in range(4): A(f"ds_read_b128 v[{8+4*i}:{11+4*i}], v1 offset:{16*i}")
    A("s_waitcnt vmcnt(0) lgkmcnt(0)")
    for p in range(8):
        a = 64 + 8 * p; b = a + 4
        for dp in range(4):
            A(f"v_perm_b32 v{24+2*dp}, v{b+dp}, v{a+dp}, s60\nv_perm_b32 v{25+2*dp}, v{b+dp}, v{a+dp}, s61")
        for bb in range(2):
            for c in range(8):
                acc = 32 + 8 * bb + c
                A(f"v_dot2_f32_bf16 v{acc}, v{24+c}, v{8+8*bb+p}, {'0' if p == 0 else f'v{acc}'}")
    g.nop(3)
    for i in range(16): A(f"v_min_u32 v{32+i}, -2, v{32+i}")
    A(f"s_lshl_b32 s46, s48, 12\ns_add_u32 s46, s46, {MBUF}")
    for i in range(4): A(f"buffer_store_dwordx4 v[{32+4*i}:{35+4*i}], v2, s[40:43], s46 offen offset:{1024*i} sc1")
    g.stamp(5)
    A("L_wo:")
    A("s_setprio 0")
    g.srd(36, 12, "0x400000")
    A("s_lshl_b32 s46, s30, 19\ns_lshl_b32 s47, s44, 15\ns_add_u32 s46, s46, s47")
    A("s_and_b32 s47, s31, 1\ns_lshl_b32 s47, s47, 1\ns_add_u32 s47, s47, s3\ns_sub_u32 s47, s47, 8")
    A("s_lshl_b32 s48, s47, 8\ns_add_u32 s46, s46, s48\ns_add_u32 s48, s46, 16384")
    A("v_lshlrev_b32 v2, 12, v6\nv_lshl_add_u32 v2, v7, 4, v2")
    for kk in range(8):
        A(f"buffer_load_dwordx4 v[{64+4*kk}:{67+4*kk}], v2, s[36:39], s{46 if kk < 4 else 48} offen offset:{(kk%4)*1024} {wnt}")
    A(f"v_lshrrev_b32 v1, 3, v7\nv_and_b32 v2, 7, v0\nv_lshl_add_u32 v1, v1, 4, v2\nv_mul_u32_u24 v1, {OSLOT}, v1")
    A(f"v_lshl_add_u32 v2, v6, 4, v1")
    A(f"s_mul_i32 s50, s30, {32*OSLOT}\ns_add_u32 s50, s50, {OBUF}")
    A("s_lshr_b32 s51, s44, 2\ns_lshl_b32 s51, s51, 3\ns_add_u32 s52, s50, s51")
    A(f"s_add_u32 s53, s52, {8*OSLOT}")
    A(f"s_lshl_b32 s51, s44, 7\ns_add_u32 s50, s50, s51\ns_add_u32 s51, s50, {8*OSLOT}")
    A(f"s_lshl_b32 s54, s30, 4\ns_add_u32 s54, s54, s44\ns_lshl_b32 s54, s54, 12\ns_lshl_b32 s55, s47, 9\ns_add_u32 s54, s54, s55\ns_add_u32 s54, s54, {SBUF}")
    A("v_lshrrev_b32 v3, 1, v6\nv_lshlrev_b32 v3, 11, v3\nv_lshl_add_u32 v3, v7, 5, v3\nv_and_b32 v4, 1, v6\nv_lshl_add_u32 v3, v4, 4, v3")
    m_g1 = mask(lambda l: (l >> 4) & 1)
    A(f"s_mov_b32 s64, {m_g1 & 0xffffffff:#x}\ns_mov_b32 s65, {m_g1 >> 32:#x}")
    A("s_waitcnt vmcnt(0)")
    for kp in range(4): perms(g, 128, 64, kp)
    A("s_setprio 3")
    g.stamp(7)
    A("s_barrier")
    g.stamp(8)
    A("L_h1:")
    A("buffer_load_dwordx4 v[8:11], v2, s[40:43], s50 offen sc1\nbuffer_load_dwordx4 v[12:15], v2, s[40:43], s50 offen offset:64 sc1")
    A("buffer_load_dwordx4 v[16:19], v2, s[40:43], s51 offen sc1\nbuffer_load_dwordx4 v[20:23], v2, s[40:43], s51 offen offset:64 sc1")
    A("buffer_load_dwordx2 v[24:25], v1, s[40:43], s52 offen offset:2048 sc1\nbuffer_load_dwordx2 v[26:27], v1, s[40:43], s53 offen offset:2048 sc1")
    A("s_waitcnt vmcnt(0)")
    A("v_max3_u32 v28, v8, v9, v10")
    for i in range(11, 27, 2): A(f"v_max3_u32 v28, v28, v{i}, v{i+1}")
    A("v_max_u32 v28, v28, v27\nv_cmp_eq_u32 vcc, -1, v28\ns_cmp_eq_u64 vcc, 0\ns_cbranch_scc1 L_h1_ok")
    spin_guard(g, 62, "L_h1", "L_h1_ok")
    A("L_h1_ok:")
    g.stamp(9)
    A("v_max_f32 v28, v24, v26")
    g.red_multi("max", [28], [X1, X2, HM])
    A("v_sub_f32 v24, v24, v28\nv_sub_f32 v26, v26, v28\nv_exp_f32 v24, v24\nv_exp_f32 v26, v26")
    g.nop(1)
    A("v_mul_f32 v25, v25, v24\nv_fmac_f32 v25, v27, v26")
    for i in range(8): A(f"v_mul_f32 v{8+i}, v{8+i}, v24")
    for i in range(8): A(f"v_fmac_f32 v{8+i}, v{16+i}, v26")
    g.red_multi("add", [25] + list(range(8, 16)), [X1, X2, HM])
    A("v_rcp_f32 v25, v25")
    g.nop(1)
    for i in range(8): A(f"v_mul_f32 v{8+i}, v{8+i}, v25")
    for i in range(4): A(f"v_cvt_pk_bf16_f32 v{16+i}, v{8+2*i}, v{9+2*i}")
    g.nop(2)
    for e in range(8):
        A(f"v_mfma_f32_16x16x32_bf16 v[{32+4*e}:{35+4*e}], v[16:19], v[{128+4*e}:{131+4*e}], 0")
    g.nop(5)
    for i in range(4):
        A(f"v_cndmask_b32 v{8+i}, v{32+4*i}, v{48+4*i}, s[64:65]\nv_min_u32 v{8+i}, -2, v{8+i}")
    A("buffer_store_dwordx4 v[8:11], v3, s[40:43], s54 offen sc1")
    g.stamp(10)
    A("s_branch L_fin")

    A("L_w10:")
    g.srd(56, 26, "256")
    g.srd(36, 22, "1024")
    A("s_lshl_b32 s44, s30, 2\ns_lshr_b32 s45, s31, 3\ns_add_u32 s44, s44, s45\ns_lshl_b32 s44, s44, 5\ns_and_b32 s45, s31, 7\ns_lshl_b32 s45, s45, 2\ns_add_u32 s44, s44, s45")
    A("s_lshl_b32 s45, s44, 1\ns_and_b32 s46, s45, 1023")
    A("v_mov_b32 v1, 0")
    A("buffer_load_dwordx2 v[40:41], v1, s[32:35], s45 offen\nbuffer_load_dwordx2 v[42:43], v1, s[36:39], s46 offen")
    A("s_lshl_b32 s47, s30, 5")
    A("L_qp:")
    if spoll:
        A("s_add_u32 s48, s26, s47\ns_addc_u32 s49, s27, 0")
        A("s_load_dword s50, s[48:49], 0 glc\ns_waitcnt lgkmcnt(0)")
        A("s_cmp_ge_u32 s50, 32\ns_cbranch_scc1 L_qp_ok")
    else:
        A("buffer_load_dword v2, v1, s[56:59], s47 offen sc1\ns_waitcnt vmcnt(0)")
        A("v_readfirstlane_b32 s50, v2\ns_cmp_ge_u32 s50, 32\ns_cbranch_scc1 L_qp_ok")
    spin_guard(g, 62, "L_qp", "L_qp_ok", 2)
    A("L_qp_ok:")
    g.stamp(2)
    A("s_lshl_b32 s47, s30, 1\ns_lshr_b32 s48, s31, 4\ns_add_u32 s47, s47, s48\ns_lshl_b32 s47, s47, 10")
    A(f"v_lshlrev_b32 v2, 4, v0\nv_add_u32 v3, {L_Q}, v2")
    A("buffer_load_dwordx4 v[8:11], v2, s[40:43], s47 offen sc1\ns_waitcnt vmcnt(0)")
    A("ds_write_b128 v3, v[8:11]\ns_waitcnt lgkmcnt(0)")
    g.stamp(3)
    A("s_barrier\ns_barrier")
    A("v_and_b32 v2, 7, v0\nv_lshlrev_b32 v2, 5, v2")
    A("L_ap:")
    A("buffer_load_dword v3, v2, s[56:59], 0 offen sc1\ns_waitcnt vmcnt(0)")
    A("v_cmp_gt_u32 vcc, 32, v3\ns_cmp_eq_u64 vcc, 0\ns_cbranch_scc1 L_ap_ok")
    spin_guard(g, 62, "L_ap", "L_ap_ok", 2)
    A("L_ap_ok:")
    g.stamp(4)
    A("s_lshr_b32 s47, s44, 9\ns_lshl_b32 s47, s47, 11")
    A("s_lshr_b32 s48, s44, 2\ns_and_b32 s48, s48, 1\ns_lshl_b32 s48, s48, 10\ns_add_u32 s48, s48, s47")
    A(f"s_and_b32 s49, s44, 511\ns_lshr_b32 s49, s49, 3\ns_lshl_b32 s49, s49, 4\ns_add_u32 s48, s48, s49\ns_add_u32 s48, s48, {MBUF}")
    A(f"s_add_u32 s49, s48, {64*4096}")
    A(f"s_lshl_b32 s50, s44, 2\ns_add_u32 s50, s50, {SBUF}\ns_add_u32 s51, s50, {64*4096}")
    A("v_lshlrev_b32 v2, 12, v0")
    A("v_mov_b32 v12, 0\nv_mov_b32 v13, 0\nv_mov_b32 v14, 0\nv_mov_b32 v15, 0")
    g.srd(52, 24, "2048")
    A("s_barrier")
    g.stamp(5)
    def gather(lab, sa, sb, partial):
        A(f"{lab}:")
        A(f"buffer_load_dwordx4 v[8:11], v2, s[40:43], s{sa} offen sc1")
        if partial: A("s_mov_b32 exec_hi, 0xffff")
        A(f"buffer_load_dwordx4 v[12:15], v2, s[40:43], s{sb} offen sc1")
        if partial: A("s_mov_b32 exec_hi, -1")
        A("s_waitcnt vmcnt(0)")
        A("v_max3_u32 v16, v8, v9, v10\nv_max3_u32 v16, v16, v11, v12\nv_max3_u32 v16, v16, v13, v14\nv_max_u32 v16, v16, v15")
        A(f"v_cmp_eq_u32 vcc, -1, v16\ns_cmp_eq_u64 vcc, 0\ns_cbranch_scc1 {lab}_ok")
        spin_guard(g, 62, lab, lab + "_ok")
        A(f"{lab}_ok:")
        for i in range(4): A(f"v_add_f32 v{8+i}, v{8+i}, v{12+i}")
        g.red_multi("add", [8, 9, 10, 11], [X1, X2, HM, RM])
        g.red_swap("add", [8, 9, 10, 11], [16, 17, 18, 19], [16, 32])
        g.rbf2(8, 9, 8, 9); g.rbf2(10, 11, 10, 11)
    gather("L_mg", 48, 49, True)
    g.stamp(6)
    A("v_lshlrev_b32 v16, 16, v42\nv_and_b32 v17, 0xffff0000, v42\nv_lshlrev_b32 v18, 16, v43\nv_and_b32 v19, 0xffff0000, v43")
    for i in range(4): A(f"v_add_f32 v{8+i}, v{8+i}, v{16+i}")
    g.rbf2(8, 9, 8, 9); g.rbf2(10, 11, 10, 11)
    for i in range(4): A(f"v_mul_f32 v{16+i}, {f2u(-math.log2(math.e)):#x}, v{8+i}")
    for i in range(4): A(f"v_exp_f32 v{16+i}, v{16+i}")
    g.nop(1)
    for i in range(4): A(f"v_add_f32 v{16+i}, 1.0, v{16+i}")
    for i in range(4): A(f"v_rcp_f32 v{16+i}, v{16+i}")
    g.nop(1)
    for i in range(4): A(f"v_mul_f32 v{44+i}, v{8+i}, v{16+i}")
    g.rbf2(44, 45, 44, 45); g.rbf2(46, 47, 46, 47)
    A("v_lshlrev_b32 v48, 16, v40\nv_and_b32 v49, 0xffff0000, v40\nv_lshlrev_b32 v50, 16, v41\nv_and_b32 v51, 0xffff0000, v41")
    g.stamp(7)
    gather("L_sg", 50, 51, False)
    for i in range(4): A(f"v_mul_f32 v{8+i}, v{8+i}, v{44+i}")
    g.rbf2(8, 9, 8, 9); g.rbf2(10, 11, 10, 11)
    for i in range(4): A(f"v_add_f32 v{8+i}, v{8+i}, v{48+i}")
    A("v_cvt_pk_bf16_f32 v8, v8, v9\nv_cvt_pk_bf16_f32 v9, v10, v11")
    A("s_mov_b64 exec, 1")
    A("buffer_store_dwordx2 v[8:9], v1, s[52:55], s45 offen")
    A("s_mov_b64 exec, -1")
    g.stamp(8)
    A("L_fin:")
    if stamps:
        g.stamp(13)
        A("s_waitcnt lgkmcnt(0)")
        A(f"s_lshl_b32 s34, s2, 4\ns_add_u32 s34, s34, s3\ns_lshl_b32 s34, s34, 7\ns_add_u32 s34, s34, {STAMP}")
        A("v_mov_b32 v1, 0\ns_mov_b64 exec, 1")
        for j in range(0, 14, 2):
            for q in range(4): A(f"v_mov_b32 v{4+q}, s{70+2*j+q}")
            A(f"buffer_store_dwordx4 v[4:7], v1, s[40:43], s34 offen offset:{j*8}")
            A("s_nop 1")
    A("L_end:")
    A("s_endpgm")
    return wrap("\n".join(g.L) + "\n", 256, 704, LDS_BYTES, 168)

if __name__ == "__main__":
    open("k1.s", "w").write(gen())
    open("k1_st.s", "w").write(gen(stamps=True))
    open("k1_plain.s", "w").write(gen(nt="", wnt=""))
    open("k1_sp_st.s", "w").write(gen(stamps=True, spoll=True))
```

```python
import sys
from common import *

QBUF = 0
OSLOT = 2176
OBUF = 0x10000
SBUF = 0x100000
MBUF = 0x200000
STAMP = 0x8000000
L_Q = 131072
L_M = L_Q + 1024
L_L = L_M + 128
L_H = L_L + 128
LDS_BYTES = L_H + 128
LOG2E = 0x3fb8aa3b
SCALE = 0x3db504f3

class G:
    def __init__(self, stamps=False, nt="nt", wnt="nt", spoll=False):
        self.L = []; self.stamps = stamps; self.nt = nt; self.wnt = wnt; self.spoll = spoll
        self.uid = 0
    def A(self, s):
        for l in s.split("\n"):
            self.L.append("  " + l.strip() if not l.strip().endswith(":") else l.strip())
    def nop(self, n):
        while n > 0:
            k = min(n, 16); self.A(f"s_nop {k-1}"); n -= k
    def stamp(self, j):
        if self.stamps: self.A(f"s_memrealtime s[{70+2*j}:{71+2*j}]")
    def lab(self, p):
        self.uid += 1; return f"L_{p}{self.uid}"
    def srd(self, d, lo, size):
        self.A(f"s_mov_b32 s{d}, s{lo}\ns_mov_b32 s{d+1}, s{lo+1}\ns_mov_b32 s{d+2}, {size}\ns_mov_b32 s{d+3}, 0x20000")
    def dpp(self, op, v, ctl):
        self.A(f"v_{op}_f32_dpp v{v}, v{v}, v{v} {ctl} row_mask:0xf bank_mask:0xf")
    def red_multi(self, op, regs, ctls):
        for c in ctls:
            if len(regs) < 3: self.nop(3 - len(regs) if len(regs) > 1 else 2)
            for v in regs: self.dpp(op, v, c)
    def red_swap(self, op, regs, tmps, which):
        for w in which:
            for v, t in zip(regs, tmps): self.A(f"v_mov_b32 v{t}, v{v}")
            self.nop(2)
            for v, t in zip(regs, tmps): self.A(f"v_permlane{w}_swap_b32 v{v}, v{t}")
            self.nop(1)
            for v, t in zip(regs, tmps): self.A(f"v_{op}_f32 v{v}, v{v}, v{t}")
    def rbf(self, d, s):
        self.A(f"v_cvt_pk_bf16_f32 v{d}, v{s}, v{s}\nv_lshlrev_b32 v{d}, 16, v{d}")
    def rbf2(self, d0, d1, s0, s1):
        self.A(f"v_cvt_pk_bf16_f32 v{d1}, v{s0}, v{s1}\nv_lshlrev_b32 v{d0}, 16, v{d1}\nv_and_b32 v{d1}, 0xffff0000, v{d1}")

X1 = "quad_perm:[1,0,3,2]"; X2 = "quad_perm:[2,3,0,1]"; HM = "row_half_mirror"; RM = "row_mirror"

def perms(g, dst, src, kp):
    a = src + 4 * (2 * kp); b = src + 4 * (2 * kp + 1)
    for dp in range(4):
        g.A(f"v_perm_b32 v{dst+4*(2*dp)+kp}, v{b+dp}, v{a+dp}, s60")
        g.A(f"v_perm_b32 v{dst+4*(2*dp+1)+kp}, v{b+dp}, v{a+dp}, s61")

def layernorm(g, f, t):
    A = g.A
    s, s2, mean, var = t, t + 1, t + 2, t + 3
    A(f"v_add_f32 v{s}, v{f}, v{f+1}")
    for i in range(2, 16): A(f"v_add_f32 v{s}, v{s}, v{f+i}")
    g.red_multi("add", [s], [X1, X2, HM])
    g.red_swap("add", [s], [s2], [16, 32])
    A(f"v_mul_f32 v{mean}, 0x3b000000, v{s}")
    A(f"v_sub_f32 v{s2}, v{f}, v{mean}\nv_mul_f32 v{var}, v{s2}, v{s2}")
    for i in range(1, 16):
        A(f"v_sub_f32 v{s2}, v{f+i}, v{mean}\nv_fmac_f32 v{var}, v{s2}, v{s2}")
    g.red_multi("add", [var], [X1, X2, HM])
    g.red_swap("add", [var], [s2], [16, 32])
    A(f"v_mul_f32 v{var}, 0x3b000000, v{var}")
    g.rbf2(mean, var, mean, var)
    A(f"v_add_f32 v{var}, 0x3727c5ac, v{var}")
    g.rbf(var, var)
    A(f"v_sqrt_f32 v{var}, v{var}")
    g.nop(1)
    g.rbf(var, var)
    A(f"v_rcp_f32 v{s}, v{var}")
    for i in range(16): A(f"v_sub_f32 v{f+i}, v{f+i}, v{mean}")
    for i in range(0, 16, 2): g.rbf2(f + i, f + i + 1, f + i, f + i + 1)
    for i in range(16):
        A(f"v_mul_f32 v{s2}, v{f+i}, v{s}")
        A(f"v_fma_f32 v{f+i}, -v{s2}, v{var}, v{f+i}")
        A(f"v_fma_f32 v{f+i}, v{f+i}, v{s}, v{s2}")
    for i in range(0, 16, 2): g.rbf2(f + i, f + i + 1, f + i, f + i + 1)

def spin_guard(g, cnt, lab_loop, lab_out, sleep=1):
    g.A(f"s_cmp_eq_u32 s{cnt}, 0\ns_cbranch_scc1 {lab_out}\ns_sub_u32 s{cnt}, s{cnt}, 1\ns_sleep {sleep}\ns_branch {lab_loop}")

def gen(stamps=False, nt="nt", wnt="nt", spoll=False, diag=None):
    if diag: stamps = True
    g = G(stamps, nt, wnt, spoll); A = g.A
    if stamps:
        for j in range(14): A(f"s_mov_b64 s[{70+2*j}:{71+2*j}], 0")
    g.stamp(0)
    A("s_cmp_ge_u32 s2, 256\ns_cbranch_scc1 L_end")
    A("s_load_dwordx16 s[4:19], s[0:1], 0")
    A("s_load_dwordx8 s[20:27], s[0:1], 64")
    A("s_load_dwordx2 s[28:29], s[0:1], 96")
    A("v_lshrrev_b32 v1, 6, v0\nv_and_b32 v0, 63, v0")
    A("v_readfirstlane_b32 s3, v1")
    A("s_and_b32 s30, s2, 7\ns_lshr_b32 s31, s2, 3")
    A("s_mov_b32 s60, 0x05040100\ns_mov_b32 s61, 0x07060302")
    A("s_mov_b32 s62, 0x40000")
    A("v_lshrrev_b32 v6, 4, v0\nv_and_b32 v7, 15, v0")
    A("s_cmp_ge_u32 s3, 8\ns_cbranch_scc1 L_svc")
    A("s_setprio 2")
    A("s_lshr_b32 s44, s31, 4\ns_lshl_b32 s44, s44, 3\ns_add_u32 s44, s44, s30\ns_lshl_b32 s44, s44, 21")
    A("s_and_b32 s45, s31, 15\ns_lshl_b32 s45, s45, 17\ns_add_u32 s44, s44, s45")
    A("s_lshl_b32 s45, s3, 14\ns_add_u32 s44, s44, s45")
    A("v_lshlrev_b32 v1, 2, v6\nv_xor_b32 v1, v1, v7\nv_lshlrev_b32 v1, 4, v1\nv_lshl_add_u32 v1, v6, 8, v1")
    A("v_xor_b32 v2, 16, v1\nv_xor_b32 v3, 32, v1\nv_xor_b32 v4, 48, v1\nv_lshlrev_b32 v5, 4, v0")
    A("s_mov_b32 m0, s45\ns_mov_b32 s46, s44")
    A("s_waitcnt lgkmcnt(0)")
    g.stamp(1)
    g.srd(32, 6, "0x2000000")
    for p in range(16):
        if p and p % 4 == 0:
            A(f"s_add_u32 m0, s45, {p*1024}\ns_add_u32 s46, s44, {p*1024}")
        A(f"buffer_load_dwordx4 v{1+p%4}, s[32:35], s46 offen offset:{(p%4)*1024} {nt} lds")
    g.srd(36, 8, "0x2000000")
    A("s_setprio 0")
    for p in range(16):
        if p % 4 == 0: A(f"s_add_u32 s46, s44, {p*1024}")
        A(f"buffer_load_dwordx4 v[{64+4*p}:{67+4*p}], v5, s[36:39], s46 offen offset:{(p%4)*1024} {nt}")
    A("s_setprio 1")
    g.stamp(2)
    g.srd(40, 28, "0x10000000")
    A("v_and_b32 v1, 3, v7\nv_lshlrev_b32 v1, 2, v1\nv_lshrrev_b32 v2, 2, v7\nv_add_u32 v1, v1, v2\nv_lshlrev_b32 v1, 8, v1")
    A("v_xor_b32 v2, v6, v7\nv_lshl_add_u32 v1, v2, 4, v1\nv_add_u32 v1, s45, v1")
    A("v_xor_b32 v2, 64, v1\nv_xor_b32 v3, 0x80, v1\nv_xor_b32 v4, 0xc0, v1")
    A(f"v_and_b32 v5, 3, v7\nv_lshlrev_b32 v5, 8, v5\nv_lshl_add_u32 v5, v6, 4, v5\nv_add_u32 v5, {L_Q}, v5")
    A("s_barrier")
    g.stamp(3)
    for j in range(4): A(f"ds_read_b128 v[{16+4*j}:{19+4*j}], v5 offset:{j*64}")
    A("s_waitcnt vmcnt(16) lgkmcnt(0)")
    g.stamp(4)
    KF = [32, 48, 128, 144]; S = [8, 12, 160, 164]
    for T in range(2):
        for j in range(4): A(f"ds_read_b128 v[{KF[T]+4*j}:{KF[T]+4*j+3}], v{1+j} offset:{T*4096}")
    for T in range(4):
        if T < 2:
            for j in range(4): A(f"ds_read_b128 v[{KF[T+2]+4*j}:{KF[T+2]+4*j+3}], v{1+j} offset:{(T+2)*4096}") if not stamps or True else None
        if stamps: A("s_waitcnt lgkmcnt(0)")
        else: A(f"s_waitcnt lgkmcnt({[8,8,4,0][T]})")
        for j in range(4):
            c = "0" if j == 0 else f"v[{S[T]}:{S[T]+3}]"
            A(f"v_mfma_f32_16x16x32_bf16 v[{S[T]}:{S[T]+3}], v[{KF[T]+4*j}:{KF[T]+4*j+3}], v[{16+4*j}:{19+4*j}], {c}")
    A(f"s_mov_b32 s47, {SCALE}\ns_mov_b32 s48, {LOG2E}")
    g.nop(6)
    sv = [S[T] + r for T in range(4) for r in range(4)]
    for i in range(0, 16, 2):
        a, b = sv[i], sv[i + 1]
        g.rbf2(a, b, a, b)
        A(f"v_mul_f32 v{a}, s47, v{a}\nv_mul_f32 v{b}, s47, v{b}")
        g.rbf2(a, b, a, b)
    A(f"v_max3_f32 v24, v{sv[0]}, v{sv[1]}, v{sv[2]}")
    for i in range(3, 15, 2): A(f"v_max3_f32 v24, v24, v{sv[i]}, v{sv[i+1]}")
    A(f"v_max_f32 v24, v24, v{sv[15]}")
    g.red_swap("max", [24], [25], [16, 32])
    A(f"v_and_b32 v26, 3, v0\nv_lshlrev_b32 v26, 5, v26\nv_add_u32 v26, {L_M}, v26")
    A("s_lshl_b32 s49, s3, 2\nv_add_u32 v27, s49, v26")
    A("ds_write_b32 v27, v24\ns_waitcnt lgkmcnt(0)\ns_barrier")
    g.stamp(5)
    A("ds_read_b128 v[32:35], v26\nds_read_b128 v[36:39], v26 offset:16\ns_waitcnt lgkmcnt(0)")
    A("v_max3_f32 v24, v32, v33, v34\nv_max3_f32 v24, v24, v35, v36\nv_max3_f32 v24, v24, v37, v38\nv_max_f32 v24, v24, v39")
    A("v_mul_f32 v24, s48, v24")
    for v in sv: A(f"v_fma_f32 v{v}, v{v}, s48, -v24")
    for v in sv: A(f"v_exp_f32 v{v}, v{v}")
    g.nop(1)
    A(f"v_add_f32 v25, v{sv[0]}, v{sv[1]}")
    for i in range(2, 16): A(f"v_add_f32 v25, v25, v{sv[i]}")
    for i in range(8): A(f"v_cvt_pk_bf16_f32 v{16+i}, v{sv[2*i]}, v{sv[2*i+1]}")
    g.red_swap("add", [25], [28], [16, 32])
    A(f"ds_write_b32 v27, v25 offset:{L_L-L_M}")
    for T in range(2):
        for kp in range(4):
            A(f"s_waitcnt vmcnt({14 - 8*T - 2*kp})")
            if T == 1 and kp == 3: g.stamp(6)
            perms(g, 128, 64 + 32 * T, kp)
        g.nop(2)
        for e in range(8):
            c = "0" if T == 0 else f"v[{32+4*e}:{35+4*e}]"
            A(f"v_mfma_f32_16x16x32_bf16 v[{32+4*e}:{35+4*e}], v[{16+4*T}:{19+4*T}], v[{128+4*e}:{131+4*e}], {c}")
    A("v_lshlrev_b32 v1, 5, v7\nv_add_u32 v1, s45, v1\nv_add_u32 v2, 1024, v1")
    A("s_mov_b64 exec, 0xffff")
    g.nop(4)
    for e in range(0, 8, 2):
        for r in range(4):
            A(f"ds_write2_b32 v{1 + r//2}, v{32+4*e+r}, v{32+4*(e+1)+r} offset0:{(r%2)*128+e} offset1:{(r%2)*128+e+1}")
    A("s_mov_b64 exec, -1")
    A("s_lshl_b32 s49, s3, 8\nv_lshlrev_b32 v1, 2, v0\nv_add_u32 v1, s49, v1\nv_add_u32 v2, 0x10000, v1")
    A(f"s_lshl_b32 s50, s30, 5\ns_add_u32 s50, s50, s31\ns_mul_i32 s50, s50, {OSLOT}\ns_add_u32 s50, s50, {OBUF}")
    A("s_waitcnt lgkmcnt(0)\ns_barrier")
    g.stamp(7)
    A("ds_read2st64_b32 v[8:9], v1 offset0:0 offset1:64\nds_read2st64_b32 v[10:11], v1 offset0:128 offset1:192")
    A("ds_read2st64_b32 v[12:13], v2 offset0:0 offset1:64\nds_read2st64_b32 v[14:15], v2 offset0:128 offset1:192")
    A(f"ds_read_b128 v[32:35], v26 offset:{L_L-L_M}\nds_read_b128 v[36:39], v26 offset:{L_L-L_M+16}")
    A("s_waitcnt lgkmcnt(0)")
    A("v_add_f32 v8, v8, v9\nv_add_f32 v10, v10, v11\nv_add_f32 v12, v12, v13\nv_add_f32 v14, v14, v15")
    A("v_add_f32 v8, v8, v10\nv_add_f32 v12, v12, v14\nv_add_f32 v8, v8, v12\nv_min_u32 v8, -2, v8")
    A("buffer_store_dword v8, v1, s[40:43], s50 offen sc1")
    A("s_cmp_lg_u32 s3, 0\ns_cbranch_scc1 L_fin")
    A("v_add_f32 v32, v32, v33\nv_add_f32 v34, v34, v35\nv_add_f32 v36, v36, v37\nv_add_f32 v38, v38, v39")
    A("v_add_f32 v32, v32, v34\nv_add_f32 v36, v36, v38\nv_add_f32 v25, v32, v36")
    A("v_min_u32 v24, -2, v24\nv_min_u32 v25, -2, v25\nv_lshlrev_b32 v1, 3, v0")
    A("s_mov_b64 exec, 0xf")
    A("buffer_store_dwordx2 v[24:25], v1, s[40:43], s50 offen offset:2048 sc1")
    A("s_mov_b64 exec, -1")
    A("s_branch L_fin")

    A("L_svc:")
    A("s_setprio 3")
    A("s_waitcnt lgkmcnt(0)")
    g.stamp(1)
    g.srd(40, 28, "0x10000000")
    g.srd(32, 4, "2048")
    A("s_cmp_eq_u32 s3, 10\ns_cbranch_scc1 L_w10")
    A("s_lshr_b32 s44, s31, 1")
    A("s_bitcmp1_b32 s31, 0\ns_cbranch_scc1 L_mtype")
    g.srd(36, 10, "0x400000")
    A("s_mov_b32 s45, 8192\ns_lshl_b32 s46, s30, 10\ns_lshl_b32 s47, s44, 6\ns_add_u32 s46, s46, s47")
    A("s_sub_u32 s47, s3, 8\ns_lshl_b32 s47, s47, 5\ns_add_u32 s46, s46, s47\ns_mov_b32 s52, 0")
    A("s_branch L_gemv")
    A("L_mtype:")
    A("s_cmp_ge_u32 s44, 14\ns_cbranch_scc1 L_nojob")
    A("s_mul_i32 s48, s30, 14\ns_add_u32 s48, s48, s44")
    A("s_cmp_eq_u32 s3, 9\ns_cbranch_scc1 L_w2job")
    g.srd(36, 16, str(512 * 1792 * 2))
    A("s_mov_b32 s45, 3584\ns_lshl_b32 s46, s48, 5\ns_mov_b32 s52, 1")
    A("L_gemv:")
    A("v_lshrrev_b32 v1, 3, v7\nv_lshlrev_b32 v1, 10, v1\nv_lshl_add_u32 v1, v6, 7, v1\nv_and_b32 v2, 7, v0\nv_lshl_add_u32 v1, v2, 4, v1")
    A("buffer_load_dwordx4 v[8:11], v1, s[32:35], 0 offen\nbuffer_load_dwordx4 v[12:15], v1, s[32:35], 0 offen offset:512")
    A("v_lshrrev_b32 v2, 1, v0\ns_lshl_b32 s47, s45, 3\nv_mul_lo_u32 v2, v2, s47\nv_and_b32 v3, 1, v0\nv_lshl_add_u32 v2, v3, 4, v2")
    A("s_lshl_b32 s49, s45, 8\ns_add_u32 s49, s49, s46")
    for T in range(2):
        for kk in range(8):
            sr = 46 if T == 0 else 49
            A(f"buffer_load_dwordx4 v[{64+32*T+4*kk}:{67+32*T+4*kk}], v2, s[36:39], s{sr} offen {wnt}")
            if kk < 7: A(f"s_add_u32 s{sr}, s{sr}, s45")
    A("s_cmp_eq_u32 s52, 1\ns_cbranch_scc1 L_m_pre")
    A("s_lshl_b32 s47, s44, 1\ns_add_u32 s47, s47, s3\ns_sub_u32 s47, s47, 8")
    A("v_mov_b32 v16, -1\nv_mov_b32 v17, -1\nv_mov_b32 v18, -1\nv_mov_b32 v19, -1\nv_lshlrev_b32 v3, 4, v0")
    A(f"s_lshl_b32 s50, s30, 5\ns_add_u32 s50, s50, s47\ns_mul_i32 s51, s50, {OSLOT}\ns_add_u32 s51, s51, {OBUF}")
    A("buffer_store_dwordx4 v[16:19], v3, s[40:43], s51 offen sc1\nbuffer_store_dwordx4 v[16:19], v3, s[40:43], s51 offen offset:1024 sc1")
    A("s_mov_b64 exec, 0xff\nbuffer_store_dwordx4 v[16:19], v3, s[40:43], s51 offen offset:2048 sc1\ns_mov_b64 exec, -1")
    A(f"s_lshl_b32 s51, s50, 11\ns_add_u32 s51, s51, {SBUF}")
    A("buffer_store_dwordx4 v[16:19], v3, s[40:43], s51 offen sc1\nbuffer_store_dwordx4 v[16:19], v3, s[40:43], s51 offen offset:1024 sc1")
    A("s_cmp_ge_u32 s47, 28\ns_cbranch_scc1 L_q_noM")
    A(f"s_mul_i32 s51, s30, 28\ns_add_u32 s51, s51, s47\ns_lshl_b32 s51, s51, 11\ns_add_u32 s51, s51, {MBUF}")
    A("buffer_store_dwordx4 v[16:19], v3, s[40:43], s51 offen sc1\nbuffer_store_dwordx4 v[16:19], v3, s[40:43], s51 offen offset:1024 sc1")
    A("s_waitcnt vmcnt(23)\ns_branch L_ln")
    A("L_q_noM:")
    A("s_waitcnt vmcnt(21)\ns_branch L_ln")
    A("L_m_pre:")
    g.srd(56, 18, "3584")
    A("v_lshlrev_b32 v3, 4, v3\ns_lshl_b32 s47, s48, 5")
    A("buffer_load_dwordx4 v[160:163], v3, s[56:59], s47 offen")
    A("s_waitcnt vmcnt(17)")
    A("L_ln:")
    g.stamp(2)
    for i in range(8):
        A(f"v_lshlrev_b32 v{32+2*i}, 16, v{8+i}\nv_and_b32 v{33+2*i}, 0xffff0000, v{8+i}")
    A("L_ln_again:")
    layernorm(g, 32, 20)
    A("s_cmp_eq_u32 s52, 1\ns_mov_b32 s52, 2\ns_cbranch_scc1 L_ln_again")
    for i in range(8): A(f"v_perm_b32 v{8+i}, v{33+2*i}, v{32+2*i}, s61")
    g.stamp(3)
    A("s_waitcnt vmcnt(0)")
    g.stamp(4)
    for T in range(2):
        for kp in range(4): perms(g, 128, 64 + 32 * T, kp)
        g.nop(2)
        for e in range(8):
            c = "0" if T == 0 else f"v[{32+4*e}:{35+4*e}]"
            A(f"v_mfma_f32_16x16x32_bf16 v[{32+4*e}:{35+4*e}], v[{8+4*T}:{11+4*T}], v[{128+4*e}:{131+4*e}], {c}")
    def mask(f):
        m = 0
        for l in range(64):
            if f(l): m |= 1 << l
        return m
    m_b1 = mask(lambda l: (l >> 1) & 1); m_b2 = mask(lambda l: (l >> 2) & 1); m_ok = mask(lambda l: ((l >> 3) & 1) == ((l >> 4) & 1))
    for (s, m) in ((64, m_b1), (66, m_b2), (68, m_ok)):
        A(f"s_mov_b32 s{s}, {m & 0xffffffff:#x}\ns_mov_b32 s{s+1}, {m >> 32:#x}")
    g.nop(2)
    for e in range(8):
        d = 32 + 4 * e
        A(f"v_cndmask_b32 v{d}, v{d}, v{d+1}, s[64:65]\nv_cndmask_b32 v{d+2}, v{d+2}, v{d+3}, s[64:65]")
        A(f"v_cndmask_b32 v{d}, v{d}, v{d+2}, s[66:67]\nv_cndmask_b32 v{16+e}, 0, v{d}, s[68:69]")
    R = list(range(16, 24))
    g.red_multi("add", R, ["row_ror:2", "row_ror:4", "row_ror:8"])
    g.red_swap("add", R, list(range(24, 32)), [16])
    A("s_bitcmp1_b32 s31, 0\ns_cbranch_scc1 L_m_post")
    for i in range(4): A(f"v_cvt_pk_bf16_f32 v{24+i}, v{16+2*i}, v{17+2*i}")
    A("v_lshrrev_b32 v1, 5, v0\nv_lshlrev_b32 v1, 10, v1\nv_and_b32 v2, 1, v0\nv_lshl_add_u32 v1, v2, 4, v1")
    A(f"s_lshl_b32 s50, s30, 11\ns_lshl_b32 s51, s44, 6\ns_add_u32 s50, s50, s51\ns_sub_u32 s51, s3, 8\ns_lshl_b32 s51, s51, 5\ns_add_u32 s50, s50, s51")
    g.srd(56, 26, "256")
    A("s_mov_b32 exec_lo, 3\ns_mov_b32 exec_hi, 3")
    A(f"buffer_store_dwordx4 v[24:27], v1, s[40:43], s50 offen sc1")
    A("s_mov_b64 exec, 1\nv_mov_b32 v1, 1\nv_mov_b32 v2, 0\ns_lshl_b32 s51, s30, 5")
    g.stamp(5)
    A("s_waitcnt vmcnt(0)")
    g.stamp(6)
    A("buffer_atomic_add v1, v2, s[56:59], s51 offen sc1")
    A("s_mov_b64 exec, -1")
    A("s_branch L_nojob")
    A("L_m_post:")
    for i in range(4):
        g.rbf2(16 + 2 * i, 17 + 2 * i, 16 + 2 * i, 17 + 2 * i)
        A(f"v_lshlrev_b32 v24, 16, v{160+i}\nv_and_b32 v25, 0xffff0000, v{160+i}")
        A(f"v_add_f32 v{16+2*i}, v{16+2*i}, v24\nv_add_f32 v{17+2*i}, v{17+2*i}, v25")
        g.rbf2(16 + 2 * i, 17 + 2 * i, 16 + 2 * i, 17 + 2 * i)
    import struct, math
    f2u = lambda x: struct.unpack("<I", struct.pack("<f", x))[0]
    c1 = -2.0 * math.sqrt(2.0 / math.pi) * math.log2(math.e)
    A(f"s_mov_b32 s50, {f2u(c1):#x}\ns_mov_b32 s51, {f2u(0.044715):#x}")
    for i in range(8):
        A(f"v_mul_f32 v{24+i}, v{16+i}, v{16+i}\nv_mul_f32 v{24+i}, s51, v{24+i}\nv_fma_f32 v{24+i}, v{24+i}, v{16+i}, v{16+i}\nv_mul_f32 v{24+i}, s50, v{24+i}")
    for i in range(8): A(f"v_exp_f32 v{24+i}, v{24+i}")
    g.nop(1)
    for i in range(8): A(f"v_add_f32 v{24+i}, 1.0, v{24+i}")
    for i in range(8): A(f"v_rcp_f32 v{24+i}, v{24+i}")
    g.nop(1)
    for i in range(8): A(f"v_mul_f32 v{16+i}, v{16+i}, v{24+i}")
    for i in range(4): A(f"v_cvt_pk_bf16_f32 v{24+i}, v{16+2*i}, v{17+2*i}")
    A(f"v_lshrrev_b32 v1, 5, v0\nv_lshlrev_b32 v1, 5, v1\nv_and_b32 v2, 1, v0\nv_lshl_add_u32 v1, v2, 4, v1\nv_add_u32 v1, {L_H}, v1")
    A("ds_write_b128 v1, v[24:27]\ns_waitcnt lgkmcnt(0)")
    g.stamp(5)
    A("L_nojob:")
    A("s_barrier\ns_barrier")
    A("s_branch L_wo")
    A("L_w2job:")
    g.srd(36, 20, str(512 * 1792 * 2))
    A("v_lshlrev_b32 v2, 4, v0\ns_lshl_b32 s46, s48, 14")
    for f in range(16):
        if f and f % 4 == 0: A("s_add_u32 s46, s46, 4096")
        A(f"buffer_load_dwordx4 v[{64+4*f}:{67+4*f}], v2, s[36:39], s46 offen offset:{(f%4)*1024} {wnt}")
    A(f"v_mov_b32 v1, {L_H}")
    A("s_barrier\ns_barrier")
    for i in range(4): A(f"ds_read_b128 v[{8+4*i}:{11+4*i}], v1 offset:{16*i}")
    A("s_waitcnt vmcnt(0) lgkmcnt(0)")
    for p in range(8):
        a = 64 + 8 * p; b = a + 4
        for dp in range(4):
            A(f"v_perm_b32 v{24+2*dp}, v{b+dp}, v{a+dp}, s60\nv_perm_b32 v{25+2*dp}, v{b+dp}, v{a+dp}, s61")
        for bb in range(2):
            for c in range(8):
                acc = 32 + 8 * bb + c
                A(f"v_dot2_f32_bf16 v{acc}, v{24+c}, v{8+8*bb+p}, {'0' if p == 0 else f'v{acc}'}")
    g.nop(3)
    for i in range(16): A(f"v_min_u32 v{32+i}, -2, v{32+i}")
    A(f"s_lshl_b32 s46, s48, 12\ns_add_u32 s46, s46, {MBUF}")
    for i in range(4): A(f"buffer_store_dwordx4 v[{32+4*i}:{35+4*i}], v2, s[40:43], s46 offen offset:{1024*i} sc1")
    g.stamp(5)
    A("L_wo:")
    A("s_setprio 0")
    g.srd(36, 12, "0x400000")
    A("s_lshl_b32 s46, s30, 19\ns_lshl_b32 s47, s44, 15\ns_add_u32 s46, s46, s47")
    A("s_and_b32 s47, s31, 1\ns_lshl_b32 s47, s47, 1\ns_add_u32 s47, s47, s3\ns_sub_u32 s47, s47, 8")
    A("s_lshl_b32 s48, s47, 8\ns_add_u32 s46, s46, s48\ns_add_u32 s48, s46, 16384")
    A("v_lshlrev_b32 v2, 12, v6\nv_lshl_add_u32 v2, v7, 4, v2")
    for kk in range(8):
        A(f"buffer_load_dwordx4 v[{64+4*kk}:{67+4*kk}], v2, s[36:39], s{46 if kk < 4 else 48} offen offset:{(kk%4)*1024} {wnt}")
    A(f"v_lshrrev_b32 v1, 3, v7\nv_and_b32 v2, 7, v0\nv_lshl_add_u32 v1, v1, 4, v2\nv_mul_u32_u24 v1, {OSLOT}, v1")
    A(f"v_lshl_add_u32 v2, v6, 4, v1")
    A(f"s_mul_i32 s50, s30, {32*OSLOT}\ns_add_u32 s50, s50, {OBUF}")
    A("s_lshr_b32 s51, s44, 2\ns_lshl_b32 s51, s51, 3\ns_add_u32 s52, s50, s51")
    A(f"s_add_u32 s53, s52, {8*OSLOT}")
    A(f"s_lshl_b32 s51, s44, 7\ns_add_u32 s50, s50, s51\ns_add_u32 s51, s50, {8*OSLOT}")
    A(f"s_lshl_b32 s54, s30, 4\ns_add_u32 s54, s54, s44\ns_lshl_b32 s54, s54, 12\ns_lshl_b32 s55, s47, 9\ns_add_u32 s54, s54, s55\ns_add_u32 s54, s54, {SBUF}")
    A("v_lshrrev_b32 v3, 1, v6\nv_lshlrev_b32 v3, 11, v3\nv_lshl_add_u32 v3, v7, 5, v3\nv_and_b32 v4, 1, v6\nv_lshl_add_u32 v3, v4, 4, v3")
    m_g1 = mask(lambda l: (l >> 4) & 1)
    A(f"s_mov_b32 s64, {m_g1 & 0xffffffff:#x}\ns_mov_b32 s65, {m_g1 >> 32:#x}")
    A("s_waitcnt vmcnt(0)")
    for kp in range(4): perms(g, 128, 64, kp)
    A("s_setprio 3")
    g.stamp(7)
    A("s_barrier")
    g.stamp(8)
    A("L_h1:")
    A("buffer_load_dwordx4 v[8:11], v2, s[40:43], s50 offen sc1\nbuffer_load_dwordx4 v[12:15], v2, s[40:43], s50 offen offset:64 sc1")
    A("buffer_load_dwordx4 v[16:19], v2, s[40:43], s51 offen sc1\nbuffer_load_dwordx4 v[20:23], v2, s[40:43], s51 offen offset:64 sc1")
    A("buffer_load_dwordx2 v[24:25], v1, s[40:43], s52 offen offset:2048 sc1\nbuffer_load_dwordx2 v[26:27], v1, s[40:43], s53 offen offset:2048 sc1")
    A("s_waitcnt vmcnt(0)")
    A("v_max3_u32 v28, v8, v9, v10")
    for i in range(11, 27, 2): A(f"v_max3_u32 v28, v28, v{i}, v{i+1}")
    A("v_max_u32 v28, v28, v27\nv_cmp_eq_u32 vcc, -1, v28\ns_cmp_eq_u64 vcc, 0\ns_cbranch_scc1 L_h1_ok")
    spin_guard(g, 62, "L_h1", "L_h1_ok")
    A("L_h1_ok:")
    g.stamp(9)
    A("v_max_f32 v28, v24, v26")
    g.red_multi("max", [28], [X1, X2, HM])
    A("v_sub_f32 v24, v24, v28\nv_sub_f32 v26, v26, v28\nv_exp_f32 v24, v24\nv_exp_f32 v26, v26")
    g.nop(1)
    A("v_mul_f32 v25, v25, v24\nv_fmac_f32 v25, v27, v26")
    for i in range(8): A(f"v_mul_f32 v{8+i}, v{8+i}, v24")
    for i in range(8): A(f"v_fmac_f32 v{8+i}, v{16+i}, v26")
    g.red_multi("add", [25] + list(range(8, 16)), [X1, X2, HM])
    A("v_rcp_f32 v25, v25")
    g.nop(1)
    for i in range(8): A(f"v_mul_f32 v{8+i}, v{8+i}, v25")
    for i in range(4): A(f"v_cvt_pk_bf16_f32 v{16+i}, v{8+2*i}, v{9+2*i}")
    g.nop(2)
    for e in range(8):
        A(f"v_mfma_f32_16x16x32_bf16 v[{32+4*e}:{35+4*e}], v[16:19], v[{128+4*e}:{131+4*e}], 0")
    g.nop(5)
    for i in range(4):
        A(f"v_cndmask_b32 v{8+i}, v{32+4*i}, v{48+4*i}, s[64:65]\nv_min_u32 v{8+i}, -2, v{8+i}")
    A("buffer_store_dwordx4 v[8:11], v3, s[40:43], s54 offen sc1")
    g.stamp(10)
    A("s_branch L_fin")

    A("L_w10:")
    g.srd(56, 26, "256")
    g.srd(36, 22, "1024")
    A("s_lshl_b32 s44, s30, 2\ns_lshr_b32 s45, s31, 3\ns_add_u32 s44, s44, s45\ns_lshl_b32 s44, s44, 5\ns_and_b32 s45, s31, 7\ns_lshl_b32 s45, s45, 2\ns_add_u32 s44, s44, s45")
    A("s_lshl_b32 s45, s44, 1\ns_and_b32 s46, s45, 1023")
    A("v_mov_b32 v1, 0")
    A("buffer_load_dwordx2 v[40:41], v1, s[32:35], s45 offen\nbuffer_load_dwordx2 v[42:43], v1, s[36:39], s46 offen")
    A("s_lshl_b32 s47, s30, 5")
    A("L_qp:")
    if spoll:
        A("s_add_u32 s48, s26, s47\ns_addc_u32 s49, s27, 0")
        A("s_load_dword s50, s[48:49], 0 glc\ns_waitcnt lgkmcnt(0)")
        A("s_cmp_ge_u32 s50, 32\ns_cbranch_scc1 L_qp_ok")
    else:
        A("buffer_load_dword v2, v1, s[56:59], s47 offen sc1\ns_waitcnt vmcnt(0)")
        A("v_readfirstlane_b32 s50, v2\ns_cmp_ge_u32 s50, 32\ns_cbranch_scc1 L_qp_ok")
    spin_guard(g, 62, "L_qp", "L_qp_ok", 2)
    A("L_qp_ok:")
    g.stamp(2)
    A("s_lshl_b32 s47, s30, 1\ns_lshr_b32 s48, s31, 4\ns_add_u32 s47, s47, s48\ns_lshl_b32 s47, s47, 10")
    A(f"v_lshlrev_b32 v2, 4, v0\nv_add_u32 v3, {L_Q}, v2")
    A("buffer_load_dwordx4 v[8:11], v2, s[40:43], s47 offen sc1\ns_waitcnt vmcnt(0)")
    A("ds_write_b128 v3, v[8:11]\ns_waitcnt lgkmcnt(0)")
    g.stamp(3)
    A("s_barrier\ns_barrier")
    A("v_and_b32 v2, 7, v0\nv_lshlrev_b32 v2, 5, v2")
    A("L_ap:")
    A("buffer_load_dword v3, v2, s[56:59], 0 offen sc1\ns_waitcnt vmcnt(0)")
    A("v_cmp_gt_u32 vcc, 32, v3\ns_cmp_eq_u64 vcc, 0\ns_cbranch_scc1 L_ap_ok")
    spin_guard(g, 62, "L_ap", "L_ap_ok", 2)
    A("L_ap_ok:")
    g.stamp(4)
    A("s_lshr_b32 s47, s44, 9\ns_lshl_b32 s47, s47, 11")
    A("s_lshr_b32 s48, s44, 2\ns_and_b32 s48, s48, 1\ns_lshl_b32 s48, s48, 10\ns_add_u32 s48, s48, s47")
    A(f"s_and_b32 s49, s44, 511\ns_lshr_b32 s49, s49, 3\ns_lshl_b32 s49, s49, 4\ns_add_u32 s48, s48, s49\ns_add_u32 s48, s48, {MBUF}")
    A(f"s_add_u32 s49, s48, {64*4096}")
    A(f"s_lshl_b32 s50, s44, 2\ns_add_u32 s50, s50, {SBUF}\ns_add_u32 s51, s50, {64*4096}")
    A("v_lshlrev_b32 v2, 12, v0")
    A("v_mov_b32 v12, 0\nv_mov_b32 v13, 0\nv_mov_b32 v14, 0\nv_mov_b32 v15, 0")
    g.srd(52, 24, "2048")
    A("s_barrier")
    g.stamp(5)
    def gather(lab, sa, sb, partial):
        A(f"{lab}:")
        A(f"buffer_load_dwordx4 v[8:11], v2, s[40:43], s{sa} offen sc1")
        if partial: A("s_mov_b32 exec_hi, 0xffff")
        A(f"buffer_load_dwordx4 v[12:15], v2, s[40:43], s{sb} offen sc1")
        if partial: A("s_mov_b32 exec_hi, -1")
        A("s_waitcnt vmcnt(0)")
        A("v_max3_u32 v16, v8, v9, v10\nv_max3_u32 v16, v16, v11, v12\nv_max3_u32 v16, v16, v13, v14\nv_max_u32 v16, v16, v15")
        A(f"v_cmp_eq_u32 vcc, -1, v16\ns_cmp_eq_u64 vcc, 0\ns_cbranch_scc1 {lab}_ok")
        spin_guard(g, 62, lab, lab + "_ok")
        A(f"{lab}_ok:")
        for i in range(4): A(f"v_add_f32 v{8+i}, v{8+i}, v{12+i}")
        g.red_multi("add", [8, 9, 10, 11], [X1, X2, HM, RM])
        g.red_swap("add", [8, 9, 10, 11], [16, 17, 18, 19], [16, 32])
        g.rbf2(8, 9, 8, 9); g.rbf2(10, 11, 10, 11)
    gather("L_mg", 48, 49, True)
    g.stamp(6)
    A("v_lshlrev_b32 v16, 16, v42\nv_and_b32 v17, 0xffff0000, v42\nv_lshlrev_b32 v18, 16, v43\nv_and_b32 v19, 0xffff0000, v43")
    for i in range(4): A(f"v_add_f32 v{8+i}, v{8+i}, v{16+i}")
    g.rbf2(8, 9, 8, 9); g.rbf2(10, 11, 10, 11)
    for i in range(4): A(f"v_mul_f32 v{16+i}, {f2u(-math.log2(math.e)):#x}, v{8+i}")
    for i in range(4): A(f"v_exp_f32 v{16+i}, v{16+i}")
    g.nop(1)
    for i in range(4): A(f"v_add_f32 v{16+i}, 1.0, v{16+i}")
    for i in range(4): A(f"v_rcp_f32 v{16+i}, v{16+i}")
    g.nop(1)
    for i in range(4): A(f"v_mul_f32 v{44+i}, v{8+i}, v{16+i}")
    g.rbf2(44, 45, 44, 45); g.rbf2(46, 47, 46, 47)
    A("v_lshlrev_b32 v48, 16, v40\nv_and_b32 v49, 0xffff0000, v40\nv_lshlrev_b32 v50, 16, v41\nv_and_b32 v51, 0xffff0000, v41")
    g.stamp(7)
    gather("L_sg", 50, 51, False)
    for i in range(4): A(f"v_mul_f32 v{8+i}, v{8+i}, v{44+i}")
    g.rbf2(8, 9, 8, 9); g.rbf2(10, 11, 10, 11)
    for i in range(4): A(f"v_add_f32 v{8+i}, v{8+i}, v{48+i}")
    A("v_cvt_pk_bf16_f32 v8, v8, v9\nv_cvt_pk_bf16_f32 v9, v10, v11")
    A("s_mov_b64 exec, 1")
    A("buffer_store_dwordx2 v[8:9], v1, s[52:55], s45 offen")
    A("s_mov_b64 exec, -1")
    g.stamp(8)
    A("L_fin:")
    if diag:
        g.stamp(13)
        A("s_waitcnt lgkmcnt(0)")
        lo, hi, j, mult = diag
        A("s_mov_b32 s34, 0")
        A(f"s_cmp_lt_u32 s3, {lo}\ns_cbranch_scc1 L_dg\ns_cmp_gt_u32 s3, {hi}\ns_cbranch_scc1 L_dg")
        A(f"s_cmp_eq_u32 s{70+2*j}, 0\ns_cbranch_scc1 L_dg")
        A(f"s_sub_u32 s34, s{70+2*j}, s70\ns_mul_i32 s34, s34, {mult}")
        A("L_dg:")
        A("s_min_u32 s34, s34, 90000\ns_add_u32 s34, s34, 10000")
        A("L_dg2:")
        A("s_memrealtime s[36:37]\ns_waitcnt lgkmcnt(0)\ns_sub_u32 s36, s36, s70\ns_cmp_lt_u32 s36, s34\ns_cbranch_scc1 L_dg2")
    elif stamps:
        g.stamp(13)
        A("s_waitcnt lgkmcnt(0)")
        A(f"s_lshl_b32 s34, s2, 4\ns_add_u32 s34, s34, s3\ns_lshl_b32 s34, s34, 7\ns_add_u32 s34, s34, {STAMP}")
        A("v_mov_b32 v1, 0\ns_mov_b64 exec, 1")
        for j in range(0, 14, 2):
            for q in range(4): A(f"v_mov_b32 v{4+q}, s{70+2*j+q}")
            A(f"buffer_store_dwordx4 v[4:7], v1, s[40:43], s34 offen offset:{j*8}")
            A("s_nop 1")
    A("L_end:")
    A("s_endpgm")
    return wrap("\n".join(g.L) + "\n", 256, 704, LDS_BYTES, 168)

if __name__ == "__main__":
    open("k1.s", "w").write(gen())
    open("k1_st.s", "w").write(gen(stamps=True))
    open("k1_plain.s", "w").write(gen(nt="", wnt=""))
    open("k1_sp_st.s", "w").write(gen(stamps=True, spoll=True))
    open("k1_d0.s", "w").write(gen(diag=(0, 0, 0, 0)))
    open("k1_d1.s", "w").write(gen(diag=(0, 7, 1, 10)))
    open("k1_d2.s", "w").write(gen(diag=(8, 9, 2, 4)))
    open("k1_d3.s", "w").write(gen(diag=(10, 10, 2, 4)))
    open("k1_d4.s", "w").write(gen(diag=(0, 7, 7, 4)))
    open("k1_d5.s", "w").write(gen(diag=(10, 10, 8, 4)))
```

```python
import sys, struct, math
from common import *

EPOCH = 0
QBUF = 0x10000
UBUF = 0x40000
MLBUF = 0x50000
OBUF = 0x80000
SBUF = 0x100000
MBUF = 0x180000
STAMP = 0x8000000
L_Q = 131072
L_ML = L_Q + 1024
L_F = L_ML + 256
L_X = L_F + 128
LDS_BYTES = L_X + 4096
LOG2E = 0x3fb8aa3b
SCALE = 0x3db504f3
f2u = lambda x: struct.unpack("<I", struct.pack("<f", x))[0]
def mask(f):
    return sum(1 << l for l in range(64) if f(l))

X1 = "quad_perm:[1,0,3,2]"; X2 = "quad_perm:[2,3,0,1]"; HM = "row_half_mirror"; RM = "row_mirror"

class G:
    def __init__(self, stamps):
        self.L = []; self.stamps = stamps
    def A(self, s):
        for l in s.split("\n"):
            l = l.strip()
            self.L.append(l if l.endswith(":") else "  " + l)
    def nop(self, n):
        while n > 0:
            k = min(n, 16); self.A(f"s_nop {k-1}"); n -= k
    def stamp(self, j):
        if self.stamps: self.A(f"s_memrealtime s[{70+2*j}:{71+2*j}]")
    def srd(self, d, lo, size):
        self.A(f"s_mov_b32 s{d}, s{lo}\ns_mov_b32 s{d+1}, s{lo+1}\ns_mov_b32 s{d+2}, {size}\ns_mov_b32 s{d+3}, 0x20000")
    def smask(self, s, m):
        self.A(f"s_mov_b32 s{s}, {m & 0xffffffff:#x}\ns_mov_b32 s{s+1}, {m >> 32:#x}")
    def red_multi(self, op, regs, ctls):
        for c in ctls:
            if len(regs) < 3: self.nop(3 - len(regs))
            for v in regs: self.A(f"v_{op}_f32_dpp v{v}, v{v}, v{v} {c} row_mask:0xf bank_mask:0xf")
    def red_swap(self, op, regs, tmps, which):
        for w in which:
            for v, t in zip(regs, tmps): self.A(f"v_mov_b32 v{t}, v{v}")
            self.nop(max(0, 3 - len(regs)))
            for v, t in zip(regs, tmps): self.A(f"v_permlane{w}_swap_b32 v{v}, v{t}")
            if len(regs) < 2: self.nop(1)
            for v, t in zip(regs, tmps): self.A(f"v_{op}_f32 v{v}, v{v}, v{t}")
    def rbf(self, d, s):
        self.A(f"v_cvt_pk_bf16_f32 v{d}, v{s}, v{s}\nv_lshlrev_b32 v{d}, 16, v{d}")
    def rbf2(self, d0, d1, s0, s1):
        self.A(f"v_cvt_pk_bf16_f32 v{d1}, v{s0}, v{s1}\nv_lshlrev_b32 v{d0}, 16, v{d1}\nv_and_b32 v{d1}, 0xffff0000, v{d1}")
    def tag(self, d, s):
        self.A(f"v_and_or_b32 v{d}, v{s}, s63, v5")
    def untag_check(self, regs, t, ok, loop, sleep):
        for r in regs: self.A(f"v_xor_b32 v{r}, v5, v{r}")
        if len(regs) == 2:
            self.A(f"v_or_b32 v{t}, v{regs[0]}, v{regs[1]}")
        else:
            self.A(f"v_or3_b32 v{t}, v{regs[0]}, v{regs[1]}, v{regs[2]}")
            rest = regs[3:]
            while len(rest) >= 2:
                self.A(f"v_or3_b32 v{t}, v{t}, v{rest[0]}, v{rest[1]}"); rest = rest[2:]
            if rest: self.A(f"v_or_b32 v{t}, v{t}, v{rest[0]}")
        self.A(f"v_and_b32 v{t}, 0xff, v{t}\nv_cmp_ne_u32 vcc, 0, v{t}\ns_cmp_eq_u64 vcc, 0\ns_cbranch_scc1 {ok}")
        self.A(f"s_cmp_eq_u32 s62, 0\ns_cbranch_scc1 {ok}\ns_sub_u32 s62, s62, 1\ns_sleep {sleep}\ns_branch {loop}")
        self.A(f"{ok}:")
    def perms(self, dst, src, kp):
        a = src + 8 * kp; b = a + 4
        for dp in range(4):
            self.A(f"v_perm_b32 v{dst+8*dp+kp}, v{b+dp}, v{a+dp}, s60")
            self.A(f"v_perm_b32 v{dst+8*dp+4+kp}, v{b+dp}, v{a+dp}, s61")
    def mfma8(self, d, a, b, first):
        for e in range(8):
            c = "0" if first else f"v[{d+4*e}:{d+4*e+3}]"
            self.A(f"v_mfma_f32_16x16x32_bf16 v[{d+4*e}:{d+4*e+3}], v[{a}:{a+3}], v[{b+4*e}:{b+4*e+3}], {c}")
    def get_tau(self):
        self.A("s_add_u32 s59, s59, 1\ns_and_b32 s58, s59, 0xff\nv_mov_b32 v5, s58")

def layernorm(g, f, t):
    A = g.A
    s, s2, mean, var = t, t + 1, t + 2, t + 3
    A(f"v_add_f32 v{s}, v{f}, v{f+1}\nv_add_f32 v{s2}, v{f+2}, v{f+3}")
    for i in range(4, 16, 2): A(f"v_add_f32 v{s}, v{s}, v{f+i}\nv_add_f32 v{s2}, v{s2}, v{f+i+1}")
    A(f"v_add_f32 v{s}, v{s}, v{s2}")
    g.red_multi("add", [s], [X1, X2, HM])
    g.red_swap("add", [s], [s2], [16, 32])
    A(f"v_mul_f32 v{mean}, 0x3b000000, v{s}")
    A(f"v_sub_f32 v{s2}, v{f}, v{mean}\nv_mul_f32 v{var}, v{s2}, v{s2}")
    for i in range(1, 16):
        A(f"v_sub_f32 v{s2}, v{f+i}, v{mean}\nv_fmac_f32 v{var}, v{s2}, v{s2}")
    g.red_multi("add", [var], [X1, X2, HM])
    g.red_swap("add", [var], [s2], [16, 32])
    A(f"v_mul_f32 v{var}, 0x3b000000, v{var}")
    g.rbf2(mean, var, mean, var)
    A(f"v_add_f32 v{var}, 0x3727c5ac, v{var}")
    g.rbf(var, var)
    A(f"v_sqrt_f32 v{var}, v{var}")
    for i in range(16): A(f"v_sub_f32 v{f+i}, v{f+i}, v{mean}")
    g.rbf(var, var)
    A(f"v_rcp_f32 v{s}, v{var}")
    for i in range(0, 16, 2): g.rbf2(f + i, f + i + 1, f + i, f + i + 1)
    for i in range(16):
        A(f"v_mul_f32 v{s2}, v{f+i}, v{s}")
        A(f"v_fma_f32 v{f+i}, -v{s2}, v{var}, v{f+i}")
        A(f"v_fma_f32 v{f+i}, v{f+i}, v{s}, v{s2}")
    for i in range(0, 16, 2): g.rbf2(f + i, f + i + 1, f + i, f + i + 1)

def gen(stamps=False, nt="nt", wnt="nt", D=3, diag=None):
    if diag: stamps = True
    g = G(stamps); A = g.A
    if stamps:
        for j in range(14): A(f"s_mov_b64 s[{70+2*j}:{71+2*j}], 0")
    g.stamp(0)
    A("s_cmp_ge_u32 s2, 256\ns_cbranch_scc1 L_end")
    A("s_load_dwordx16 s[4:19], s[0:1], 0")
    A("s_load_dwordx8 s[20:27], s[0:1], 64")
    A("s_load_dwordx2 s[28:29], s[0:1], 96")
    A("v_lshrrev_b32 v1, 6, v0\nv_and_b32 v0, 63, v0")
    A("v_readfirstlane_b32 s3, v1")
    A("s_and_b32 s30, s2, 7\ns_lshr_b32 s31, s2, 3")
    A("s_mov_b32 s60, 0x05040100\ns_mov_b32 s61, 0x07060302\ns_mov_b32 s62, 0x40000\ns_mov_b32 s63, 0xffffff00")
    A("v_lshrrev_b32 v6, 4, v0\nv_and_b32 v7, 15, v0")
    A("s_cmp_ge_u32 s3, 8\ns_cbranch_scc1 L_svc")
    A("s_lshr_b32 s44, s31, 4\ns_lshl_b32 s44, s44, 3\ns_add_u32 s44, s44, s30\ns_lshl_b32 s44, s44, 21")
    A("s_and_b32 s45, s31, 15\ns_lshl_b32 s45, s45, 17\ns_add_u32 s44, s44, s45")
    A("s_lshl_b32 s45, s3, 10\ns_add_u32 s44, s44, s45\ns_lshl_b32 s45, s3, 14")
    A("v_lshlrev_b32 v1, 2, v6\nv_xor_b32 v1, v1, v7\nv_lshlrev_b32 v1, 4, v1\nv_lshl_add_u32 v1, v6, 8, v1")
    A("v_xor_b32 v2, 16, v1\nv_xor_b32 v3, 32, v1\nv_xor_b32 v4, 48, v1\nv_lshlrev_b32 v31, 4, v0")
    A("s_mov_b32 m0, s45\ns_mov_b32 s46, s44\ns_mov_b32 s34, 0x2000000\ns_mov_b32 s35, 0x20000")
    A("s_waitcnt lgkmcnt(0)")
    g.stamp(1)
    A("s_mov_b32 s32, s6\ns_mov_b32 s33, s7")
    for p in range(16):
        if p >= D: A(f"s_waitcnt vmcnt({D-1})")
        A(f"buffer_load_dwordx4 v{1+p%4}, s[32:35], s46 offen {nt} lds")
        if p < 15: A(f"s_add_u32 m0, m0, 1024\ns_add_u32 s46, s46, 8192")
        if p == D - 1:
            A(f"s_load_dword s59, s[28:29], {EPOCH}")
            g.srd(36, 8, "0x2000000")
            g.srd(40, 28, "0x10000000")
    def vload(p):
        A(f"buffer_load_dwordx4 v[{64+4*p}:{67+4*p}], v31, s[36:39], s44 offen {nt}")
        if p < 15: A("s_add_u32 s44, s44, 8192")
    NV0 = D + 2
    for p in range(NV0):
        if p < D: A(f"s_waitcnt vmcnt({D-1})")
        vload(p)
    g.stamp(2)
    A("v_and_b32 v1, 3, v7\nv_lshlrev_b32 v1, 2, v1\nv_lshrrev_b32 v2, 2, v7\nv_add_u32 v1, v1, v2\nv_lshlrev_b32 v1, 8, v1")
    A("v_xor_b32 v2, v6, v7\nv_lshl_add_u32 v1, v2, 4, v1\nv_add_u32 v1, s45, v1")
    A("v_xor_b32 v2, 64, v1\nv_xor_b32 v3, 0x80, v1\nv_xor_b32 v4, 0xc0, v1")
    A(f"v_and_b32 v30, 3, v7\nv_lshlrev_b32 v29, 8, v30\nv_lshl_add_u32 v29, v6, 4, v29\nv_add_u32 v29, {L_Q}, v29")
    KF = [32, 48, 128, 144]; S = [8, 12, 160, 164]
    for T in range(2):
        for j in range(4): A(f"ds_read_b128 v[{KF[T]+4*j}:{KF[T]+4*j+3}], v{1+j} offset:{T*4096}")
    A("s_waitcnt lgkmcnt(0)")
    g.get_tau()
    A("s_barrier")
    g.stamp(3)
    QF = [16, 20, 24, 164]
    for j in range(4): A(f"ds_read_b128 v[{QF[j]}:{QF[j]+3}], v29 offset:{j*64}")
    for T in range(2, 4):
        for j in range(4): A(f"ds_read_b128 v[{KF[T]+4*j}:{KF[T]+4*j+3}], v{1+j} offset:{T*4096}")
    S = [8, 12, 160, 32]
    for T in range(4):
        if T != 1: A(f"s_waitcnt lgkmcnt({0 if stamps else [8,8,4,0][T]})")
        for j in range(4):
            c = "0" if j == 0 else f"v[{S[T]}:{S[T]+3}]"
            A(f"v_mfma_f32_16x16x32_bf16 v[{S[T]}:{S[T]+3}], v[{KF[T]+4*j}:{KF[T]+4*j+3}], v[{QF[j]}:{QF[j]+3}], {c}")
    A(f"s_mov_b32 s47, {SCALE}\ns_mov_b32 s48, {LOG2E}")
    sv = [S[T] + r for T in range(4) for r in range(4)]
    for i in range(0, 16, 2):
        a, b = sv[i], sv[i + 1]
        g.rbf2(a, b, a, b)
        A(f"v_mul_f32 v{a}, s47, v{a}\nv_mul_f32 v{b}, s47, v{b}")
        g.rbf2(a, b, a, b)
    A(f"v_max3_f32 v24, v{sv[0]}, v{sv[1]}, v{sv[2]}")
    for i in range(3, 15, 2): A(f"v_max3_f32 v24, v24, v{sv[i]}, v{sv[i+1]}")
    A(f"v_max_f32 v24, v24, v{sv[15]}")
    g.red_swap("max", [24], [25], [16, 32])
    A("v_mul_f32 v26, s48, v24")
    for v in sv: A(f"v_fma_f32 v{v}, v{v}, s48, -v26")
    for v in sv: A(f"v_exp_f32 v{v}, v{v}")
    A(f"v_add_f32 v25, v{sv[0]}, v{sv[1]}\nv_add_f32 v26, v{sv[2]}, v{sv[3]}")
    for i in range(4, 16, 2): A(f"v_add_f32 v25, v25, v{sv[i]}\nv_add_f32 v26, v26, v{sv[i+1]}")
    A("v_add_f32 v25, v25, v26")
    for i in range(8): A(f"v_cvt_pk_bf16_f32 v{16+i}, v{sv[2*i]}, v{sv[2*i+1]}")
    for p in range(NV0, NV0 + D): vload(p)
    g.red_swap("add", [25], [26], [16, 32])
    A(f"s_lshl_b32 s49, s3, 3\ns_add_u32 s49, s49, {L_ML}\nv_lshl_add_u32 v27, v30, 6, s49\nv_min_u32 v25, -2, v25")
    A("ds_write_b64 v27, v[24:25]")
    g.stamp(4)
    nxt = NV0 + D; done = 0
    def do_pairs(landed):
        nonlocal done
        while done < 8 and 2 * done + 1 < landed:
            T, kp = divmod(done, 4)
            g.perms(128, 64 + 32 * T, kp); done += 1
            if kp == 3:
                g.nop(2); g.mfma8(32, 16 + 4 * T, 128, T == 0)
    while nxt < 16:
        A(f"s_waitcnt vmcnt({D-1})"); landed = nxt - (D - 1)
        vload(nxt); nxt += 1
        do_pairs(landed)
    A("v_lshlrev_b32 v1, 5, v7\nv_add_u32 v1, s45, v1\nv_add_u32 v2, 1024, v1")
    A("s_lshl_b32 s49, s3, 8\nv_lshlrev_b32 v3, 2, v0\nv_add_u32 v3, s49, v3\nv_add_u32 v4, 0x10000, v3")
    A(f"s_lshl_b32 s50, s30, 5\ns_add_u32 s50, s50, s31\ns_lshl_b32 s50, s50, 11\ns_add_u32 s50, s50, {OBUF}")
    A(f"s_lshr_b32 s49, s3, 1\ns_lshl_b32 s49, s49, 5\ns_add_u32 s49, s49, {L_F}\nv_mov_b32 v28, s49")
    A("s_setprio 3")
    for rem in range(D - 1, -1, -1):
        if rem % 2 == 0 :
            A(f"s_waitcnt vmcnt({rem})")
            if rem == 0: g.stamp(6)
            do_pairs(16 - rem)
    A("s_mov_b64 exec, 0xffff")
    g.nop(1)
    for e in range(0, 8, 2):
        for r in range(4):
            A(f"ds_write2_b32 v{1 + r//2}, v{32+4*e+r}, v{32+4*(e+1)+r} offset0:{(r%2)*128+e} offset1:{(r%2)*128+e+1}")
    A("s_mov_b64 exec, -1")
    A("s_waitcnt lgkmcnt(0)\ns_barrier")
    g.stamp(7)
    A("ds_read2st64_b32 v[8:9], v3 offset0:0 offset1:64\nds_read2st64_b32 v[10:11], v3 offset0:128 offset1:192")
    A("ds_read_b128 v[16:19], v28")
    A("ds_read2st64_b32 v[12:13], v4 offset0:0 offset1:64\nds_read2st64_b32 v[14:15], v4 offset0:128 offset1:192")
    A("ds_read_b128 v[20:23], v28 offset:16")
    A(f"s_waitcnt lgkmcnt({0 if stamps else 3})")
    A("v_mul_f32 v8, v8, v16\nv_mul_f32 v9, v9, v17\nv_fmac_f32 v8, v10, v18\nv_fmac_f32 v9, v11, v19")
    A("s_waitcnt lgkmcnt(0)")
    A("v_fmac_f32 v8, v12, v20\nv_fmac_f32 v9, v13, v21\nv_fmac_f32 v8, v14, v22\nv_fmac_f32 v9, v15, v23\nv_add_f32 v8, v8, v9")
    g.tag(8, 8)
    A("buffer_store_dword v8, v3, s[40:43], s50 offen sc1")
    A("s_branch L_fin")

    A("L_svc:")
    A("s_setprio 3")
    A("v_lshrrev_b32 v1, 3, v7\nv_lshlrev_b32 v1, 10, v1\nv_lshl_add_u32 v1, v6, 7, v1\nv_and_b32 v2, 7, v0\nv_lshl_add_u32 v1, v2, 4, v1")
    A("s_mul_i32 s48, s30, 28\ns_add_u32 s48, s48, s31\ns_lshr_b32 s49, s48, 3\ns_and_b32 s48, s48, 7")
    A("s_waitcnt lgkmcnt(0)")
    g.stamp(1)
    A(f"s_load_dword s59, s[28:29], {EPOCH}")
    g.srd(40, 28, "0x10000000")
    g.srd(32, 4, "2048")
    A("s_cmp_eq_u32 s3, 10\ns_cbranch_scc1 L_w10")
    A("s_cmp_eq_u32 s3, 9\ns_cbranch_scc1 L_w9")
    g.srd(36, 10, "0x400000")
    A("s_lshr_b32 s51, s31, 3\ns_and_b32 s47, s31, 7")
    A("s_mov_b32 s45, 8192\ns_lshl_b32 s46, s30, 10\ns_lshl_b32 s50, s47, 7\ns_add_u32 s46, s46, s50\ns_lshl_b32 s50, s51, 20\ns_add_u32 s46, s46, s50")
    A(f"s_lshl_b32 s53, s30, 14\ns_lshl_b32 s50, s51, 11\ns_add_u32 s53, s53, s50\ns_lshl_b32 s50, s47, 7\ns_add_u32 s53, s53, s50\ns_add_u32 s53, s53, {QBUF}")
    A("s_add_u32 s54, s53, 1024\ns_mov_b32 s55, 13\ns_mov_b32 s56, 4\ns_mov_b32 s52, 0")
    A("s_branch L_gemv")
    A("L_w9:")
    A("s_cmp_ge_u32 s31, 28\ns_cbranch_scc1 L_nojob")
    A("s_cmp_ge_u32 s48, 4\ns_cbranch_scc1 L_m2")
    g.srd(36, 16, str(512 * 1792 * 2))
    A(f"s_mov_b32 s51, s48\ns_mov_b32 s45, 3584\ns_lshl_b32 s46, s49, 7\ns_mul_i32 s50, s48, {128*3584}\ns_add_u32 s46, s46, s50")
    A(f"s_lshl_b32 s53, s49, 11\ns_lshl_b32 s50, s48, 9\ns_add_u32 s53, s53, s50\ns_add_u32 s53, s53, {UBUF}")
    A("s_add_u32 s54, s53, 16\ns_mov_b32 s55, 8\ns_mov_b32 s56, 5\ns_mov_b32 s52, 1")
    A("L_gemv:")
    A("buffer_load_dwordx4 v[8:11], v1, s[32:35], 0 offen\nbuffer_load_dwordx4 v[12:15], v1, s[32:35], 0 offen offset:512")
    A("v_lshrrev_b32 v3, 3, v0\ns_lshl_b32 s47, s45, 3\nv_mul_lo_u32 v3, v3, s47\nv_lshl_add_u32 v3, v2, 4, v3")
    A("s_lshl_b32 s50, s45, 6\ns_add_u32 s50, s50, s46")
    for T in range(2):
        for kk in range(8):
            sr = 46 if T == 0 else 50
            A(f"buffer_load_dwordx4 v[{64+32*T+4*kk}:{67+32*T+4*kk}], v3, s[36:39], s{sr} offen {wnt}")
            if kk < 7: A(f"s_add_u32 s{sr}, s{sr}, s45")
    A(f"s_sub_u32 s47, s3, 8\ns_lshl_b32 s47, s47, 11\ns_add_u32 s47, s47, {L_X}\nv_add_u32 v1, s47, v1")
    A("s_lshl_b32 s50, s51, 8\ns_add_u32 s47, s47, s50")
    A("v_lshrrev_b32 v3, 3, v7\nv_lshlrev_b32 v3, 10, v3\nv_lshl_add_u32 v3, v6, 5, v3\nv_and_b32 v4, 1, v0\nv_lshl_add_u32 v3, v4, 4, v3\nv_add_u32 v3, s47, v3")
    A("v_lshrrev_b32 v4, 5, v0\nv_lshlrev_b32 v4, s55, v4\nv_lshlrev_b32 v2, s56, v2\nv_add_u32 v4, v4, v2")
    A("s_waitcnt vmcnt(16)")
    g.stamp(2)
    for i in range(8):
        A(f"v_lshlrev_b32 v{32+2*i}, 16, v{8+i}\nv_and_b32 v{33+2*i}, 0xffff0000, v{8+i}")
    A("L_ln_again:")
    layernorm(g, 32, 20)
    A("s_cmp_eq_u32 s52, 1\ns_mov_b32 s52, 2\ns_cbranch_scc1 L_ln_again")
    for i in range(8): A(f"v_perm_b32 v{8+i}, v{33+2*i}, v{32+2*i}, s61")
    A("ds_write_b128 v1, v[8:11]\nds_write_b128 v1, v[12:15] offset:512\ns_waitcnt lgkmcnt(0)")
    A("ds_read_b128 v[8:11], v3\nds_read_b128 v[12:15], v3 offset:128")
    g.get_tau()
    g.stamp(3)
    for T in range(2):
        A(f"s_waitcnt vmcnt({8-8*T})")
        for kp in range(4): g.perms(128, 64 + 32 * T, kp)
        A("s_waitcnt lgkmcnt(0)")
        g.nop(1)
        g.mfma8(32, 8 + 4 * T, 128, T == 0)
    g.nop(2)
    for e in range(8):
        if e >= 6: g.nop(1)
        A(f"v_add_f32_dpp v{16+e}, v{33+4*e}, v{32+4*e} row_ror:8 row_mask:0xf bank_mask:0xf")
    for e in range(8): g.tag(16 + e, 16 + e)
    A("s_mov_b32 exec_lo, 0xff\ns_mov_b32 exec_hi, 0xff")
    A("buffer_store_dwordx4 v[16:19], v4, s[40:43], s53 offen sc1\nbuffer_store_dwordx4 v[20:23], v4, s[40:43], s54 offen sc1")
    A("s_mov_b64 exec, -1")
    g.stamp(4)
    A("L_nojob:")
    A("s_mov_b32 s52, 0")
    A("s_waitcnt lgkmcnt(0)")
    A("s_cmp_lt_u32 s31, 28\ns_cbranch_scc1 L_tau_ok\ns_cmp_eq_u32 s3, 8\ns_cbranch_scc1 L_tau_ok")
    g.get_tau()
    A("L_tau_ok:")
    A("s_barrier")
    A("s_branch L_wo")
    A("L_m2:")
    g.srd(36, 20, str(512 * 1792 * 2))
    A("s_sub_u32 s48, s48, 4\ns_lshl_b32 s46, s49, 16\ns_lshl_b32 s47, s48, 8\ns_add_u32 s46, s46, s47")
    A("v_lshlrev_b32 v2, 12, v6\nv_lshl_add_u32 v2, v7, 4, v2")
    for q in range(4):
        for kk in range(4):
            r = 64 + 16 * q + 4 * kk
            A(f"buffer_load_dwordx4 v[{r}:{r+3}], v2, s[36:39], s46 offen offset:{kk*1024} {wnt}")
        if q < 3: A("s_add_u32 s46, s46, 16384")
    g.srd(36, 18, "3584")
    A("v_bfe_u32 v3, v0, 2, 1\nv_lshlrev_b32 v3, 5, v3\nv_lshl_add_u32 v3, v6, 2, v3")
    A("v_lshlrev_b32 v4, 1, v3\ns_lshl_b32 s47, s49, 7")
    A("buffer_load_dwordx2 v[24:25], v4, s[36:39], s47 offen\nbuffer_load_dwordx2 v[26:27], v4, s[36:39], s47 offen offset:32")
    A("v_and_b32 v4, 3, v0\nv_lshlrev_b32 v4, 9, v4\nv_lshl_add_u32 v3, v3, 2, v4\nv_bfe_u32 v4, v0, 3, 1\nv_lshl_add_u32 v3, v4, 8, v3")
    A(f"s_lshl_b32 s47, s49, 11\ns_add_u32 s47, s47, {UBUF}")
    A("s_waitcnt vmcnt(0) lgkmcnt(0)")
    g.get_tau()
    for kp in range(4): g.perms(128, 64, kp)
    for kp in range(4): g.perms(32, 96, kp)
    A("s_barrier")
    g.stamp(2)
    A("L_u:")
    A("buffer_load_dwordx4 v[8:11], v3, s[40:43], s47 offen sc1\nbuffer_load_dwordx4 v[12:15], v3, s[40:43], s47 offen offset:64 sc1")
    A("s_waitcnt vmcnt(0)")
    g.untag_check(list(range(8, 16)), 16, "L_u_ok", "L_u", 8)
    g.stamp(3)
    g.red_multi("add", list(range(8, 16)), [X1, X2])
    for i in range(4):
        g.rbf2(8 + 2 * i, 9 + 2 * i, 8 + 2 * i, 9 + 2 * i)
        A(f"v_lshlrev_b32 v16, 16, v{24+i}\nv_and_b32 v17, 0xffff0000, v{24+i}")
        A(f"v_add_f32 v{8+2*i}, v{8+2*i}, v16\nv_add_f32 v{9+2*i}, v{9+2*i}, v17")
        g.rbf2(8 + 2 * i, 9 + 2 * i, 8 + 2 * i, 9 + 2 * i)
    c1 = -2.0 * math.sqrt(2.0 / math.pi) * math.log2(math.e)
    A(f"s_mov_b32 s50, {f2u(c1):#x}\ns_mov_b32 s51, {f2u(0.044715):#x}")
    for i in range(8):
        A(f"v_mul_f32 v{16+i}, v{8+i}, v{8+i}\nv_mul_f32 v{16+i}, s51, v{16+i}\nv_fma_f32 v{16+i}, v{16+i}, v{8+i}, v{8+i}\nv_mul_f32 v{16+i}, s50, v{16+i}")
    for i in range(8): A(f"v_exp_f32 v{16+i}, v{16+i}")
    for i in range(8): A(f"v_add_f32 v{16+i}, 1.0, v{16+i}")
    for i in range(8): A(f"v_rcp_f32 v{16+i}, v{16+i}")
    for i in range(8): A(f"v_mul_f32 v{8+i}, v{8+i}, v{16+i}")
    for i in range(4): A(f"v_cvt_pk_bf16_f32 v{16+i}, v{8+2*i}, v{9+2*i}")
    g.smask(64, mask(lambda l: (l >> 2) & 1))
    for i in range(4): A(f"v_mov_b32_dpp v{20+i}, v{16+i} {HM} row_mask:0xf bank_mask:0xf")
    for i in range(4): A(f"v_cndmask_b32 v{8+i}, v{16+i}, v{20+i}, s[64:65]\nv_cndmask_b32 v{12+i}, v{20+i}, v{16+i}, s[64:65]")
    g.nop(2)
    g.mfma8(64, 8, 128, True)
    g.mfma8(64, 12, 32, False)
    g.smask(64, mask(lambda l: (l >> 4) & 1))
    g.nop(3)
    for i in range(4):
        A(f"v_cndmask_b32 v{160+i}, v{64+4*i}, v{80+4*i}, s[64:65]")
        g.tag(160 + i, 160 + i)
    A(f"s_lshl_b32 s57, s49, 12\ns_lshl_b32 s47, s48, 9\ns_add_u32 s57, s57, s47\ns_add_u32 s57, s57, {MBUF}\ns_mov_b32 s52, 1")
    g.stamp(4)
    A("L_wo:")
    A("s_setprio 0")
    g.srd(36, 12, "0x400000")
    A("s_lshr_b32 s44, s31, 1")
    A("s_lshl_b32 s46, s30, 19\ns_lshl_b32 s47, s44, 15\ns_add_u32 s46, s46, s47")
    A("s_and_b32 s47, s31, 1\ns_lshl_b32 s47, s47, 1\ns_add_u32 s47, s47, s3\ns_sub_u32 s47, s47, 8")
    A("s_lshl_b32 s48, s47, 8\ns_add_u32 s46, s46, s48\ns_add_u32 s48, s46, 16384")
    A("v_lshlrev_b32 v2, 12, v6\nv_lshl_add_u32 v2, v7, 4, v2")
    for kk in range(8):
        A(f"buffer_load_dwordx4 v[{64+4*kk}:{67+4*kk}], v2, s[36:39], s{46 if kk < 4 else 48} offen offset:{(kk%4)*1024} {wnt}")
    A("v_lshrrev_b32 v1, 3, v7\nv_and_b32 v2, 7, v0\nv_lshl_add_u32 v1, v1, 4, v2\nv_lshlrev_b32 v1, 11, v1\nv_lshl_add_u32 v2, v6, 4, v1")
    A(f"s_lshl_b32 s50, s30, 16\ns_lshl_b32 s51, s44, 7\ns_add_u32 s50, s50, s51\ns_add_u32 s50, s50, {OBUF}\ns_add_u32 s51, s50, {8*2048}")
    A(f"s_lshl_b32 s54, s30, 4\ns_add_u32 s54, s54, s44\ns_lshl_b32 s54, s54, 12\ns_lshl_b32 s55, s47, 9\ns_add_u32 s54, s54, s55\ns_add_u32 s54, s54, {SBUF}")
    A("v_lshrrev_b32 v3, 1, v6\nv_lshlrev_b32 v3, 11, v3\nv_lshl_add_u32 v3, v7, 5, v3\nv_and_b32 v4, 1, v6\nv_lshl_add_u32 v3, v4, 4, v3")
    g.smask(64, mask(lambda l: (l >> 4) & 1))
    A("s_waitcnt vmcnt(0)")
    for kp in range(4): g.perms(128, 64, kp)
    g.stamp(7)
    A("s_barrier")
    g.stamp(8)
    A("s_cmp_eq_u32 s52, 0\ns_cbranch_scc1 L_h1")
    A("buffer_store_dwordx4 v[160:163], v3, s[40:43], s57 offen sc1")
    A("L_h1:")
    A("buffer_load_dwordx4 v[8:11], v2, s[40:43], s50 offen sc1\nbuffer_load_dwordx4 v[12:15], v2, s[40:43], s50 offen offset:64 sc1")
    A("buffer_load_dwordx4 v[16:19], v2, s[40:43], s51 offen sc1\nbuffer_load_dwordx4 v[20:23], v2, s[40:43], s51 offen offset:64 sc1")
    A("s_waitcnt vmcnt(0)")
    g.untag_check(list(range(8, 24)), 24, "L_h1_ok", "L_h1", 2)
    A("s_setprio 3")
    g.stamp(9)
    for i in range(8): A(f"v_add_f32 v{8+i}, v{8+i}, v{16+i}")
    g.red_multi("add", list(range(8, 16)), [X1, X2, HM])
    for i in range(4): A(f"v_cvt_pk_bf16_f32 v{16+i}, v{8+2*i}, v{9+2*i}")
    g.nop(2)
    g.mfma8(32, 16, 128, True)
    g.nop(5)
    for i in range(4):
        A(f"v_cndmask_b32 v{8+i}, v{32+4*i}, v{48+4*i}, s[64:65]")
        g.tag(8 + i, 8 + i)
    A("buffer_store_dwordx4 v[8:11], v3, s[40:43], s54 offen sc1")
    g.stamp(10)
    A("s_branch L_fin")

    A("L_w10:")
    g.srd(36, 22, "1024")
    A("s_lshl_b32 s44, s30, 2\ns_lshr_b32 s45, s31, 3\ns_add_u32 s44, s44, s45\ns_lshl_b32 s44, s44, 5\ns_and_b32 s45, s31, 7\ns_lshl_b32 s45, s45, 2\ns_add_u32 s44, s44, s45")
    A("s_lshl_b32 s45, s44, 1\ns_and_b32 s46, s45, 1023")
    A("v_and_b32 v1, 3, v0\nv_lshlrev_b32 v1, 1, v1")
    A("buffer_load_ushort v40, v1, s[32:35], s45 offen\nbuffer_load_ushort v41, v1, s[36:39], s46 offen")
    A(f"v_lshlrev_b32 v2, 2, v0\nv_add_u32 v2, {L_ML}, v2\nv_mov_b32 v3, -1\nds_write_b32 v2, v3")
    A(f"s_lshl_b32 s47, s30, 1\ns_lshr_b32 s48, s31, 4\ns_add_u32 s47, s47, s48\ns_lshl_b32 s49, s47, 13\ns_add_u32 s49, s49, {QBUF}\ns_add_u32 s50, s49, 4096")
    A(f"v_lshlrev_b32 v2, 4, v0\nv_add_u32 v3, {L_Q}, v2")
    A("s_waitcnt lgkmcnt(0)")
    g.get_tau()
    A("s_sleep 64")
    A("L_q:")
    for i in range(8):
        A(f"buffer_load_dwordx4 v[{8+4*i}:{11+4*i}], v2, s[40:43], s{49 + i//4} offen offset:{(i%4)*1024} sc1")
    A("s_waitcnt vmcnt(0)")
    g.untag_check(list(range(8, 40)), 42, "L_q_ok", "L_q", 8)
    g.stamp(2)
    for i in range(8): A(f"v_add_f32 v{8+i}, v{8+i}, v{16+i}\nv_add_f32 v{24+i}, v{24+i}, v{32+i}")
    for i in range(8): A(f"v_add_f32 v{8+i}, v{8+i}, v{24+i}")
    for i in range(4): A(f"v_cvt_pk_bf16_f32 v{16+i}, v{8+2*i}, v{9+2*i}")
    A("ds_write_b128 v3, v[16:19]\ns_waitcnt lgkmcnt(0)")
    g.stamp(3)
    A("s_barrier")
    A(f"v_and_b32 v2, 7, v0\nv_lshl_add_u32 v2, v6, 3, v2\nv_lshlrev_b32 v3, 3, v2\nv_add_u32 v3, {L_ML}, v3\nv_lshlrev_b32 v4, 2, v2\nv_add_u32 v4, {L_F}, v4")
    A(f"s_mov_b32 s48, {LOG2E}")
    A(f"s_lshl_b32 s49, s47, 11\ns_add_u32 s49, s49, {MLBUF}\ns_and_b32 s50, s31, 15\ns_lshl_b32 s50, s50, 7\ns_add_u32 s50, s50, s49")
    A("v_lshlrev_b32 v20, 3, v6\nv_lshl_add_u32 v21, v7, 7, v20")
    A("L_ml:")
    A("ds_read_b64 v[8:9], v3\ns_waitcnt lgkmcnt(0)")
    A("v_cmp_eq_u32 vcc, -1, v9\ns_cmp_eq_u64 vcc, 0\ns_cbranch_scc1 L_ml_ok")
    A("s_cmp_eq_u32 s62, 0\ns_cbranch_scc1 L_ml_ok\ns_sub_u32 s62, s62, 1\ns_sleep 2\ns_branch L_ml")
    A("L_ml_ok:")
    g.stamp(4)
    A("v_mov_b32 v10, v8")
    g.red_multi("max", [10], [X1, X2, HM])
    A("v_mul_f32 v8, s48, v8\nv_fma_f32 v12, v10, s48, -v8\nv_exp_f32 v12, -v12")
    g.nop(1)
    A("v_mul_f32 v11, v9, v12")
    g.red_multi("add", [11], [X1, X2, HM])
    g.tag(10, 10); g.tag(11, 11)
    g.smask(64, mask(lambda l: (l & 15) == 0))
    A("s_mov_b64 exec, s[64:65]")
    A("buffer_store_dwordx2 v[10:11], v20, s[40:43], s50 offen sc1")
    A("s_mov_b64 exec, -1")
    A("s_sleep 16")
    A("L_mg:")
    A("buffer_load_dwordx2 v[12:13], v21, s[40:43], s49 offen sc1\ns_waitcnt vmcnt(0)")
    g.untag_check([12, 13], 14, "L_mg_ok", "L_mg", 8)
    g.stamp(5)
    A("v_mov_b32 v10, v12")
    g.red_multi("max", [10], [X1, X2, HM, RM])
    A("v_mul_f32 v10, s48, v10\nv_fma_f32 v12, v12, s48, -v10\nv_exp_f32 v12, v12\nv_sub_f32 v8, v8, v10\nv_exp_f32 v8, v8\nv_mul_f32 v11, v13, v12")
    g.red_multi("add", [11], [X1, X2, HM, RM])
    A("v_rcp_f32 v11, v11")
    g.nop(1)
    A("v_mul_f32 v8, v8, v11\nds_write_b32 v4, v8")
    A("v_lshrrev_b32 v2, 2, v0\nv_lshlrev_b32 v2, 12, v2\nv_lshl_add_u32 v2, v1, 1, v2")
    A(f"s_lshl_b32 s47, s44, 2\ns_add_u32 s48, s47, {MBUF}\ns_add_u32 s49, s48, 0x10000")
    for n in range(8): A(f"s_add_u32 s{50+n}, s47, {SBUF + n*0x10000}")
    g.srd(36, 24, "2048")
    A("v_lshlrev_b32 v40, 16, v40\nv_lshlrev_b32 v41, 16, v41")
    A("s_waitcnt lgkmcnt(0)")
    A("s_setprio 0")
    g.stamp(6)
    A("s_barrier")
    g.stamp(7)
    A("s_sleep 8")
    A("L_pg:")
    A("v_mov_b32 v9, v5")
    A("buffer_load_dword v8, v2, s[40:43], s48 offen sc1\ns_mov_b32 exec_hi, 0xffff\nbuffer_load_dword v9, v2, s[40:43], s49 offen sc1\ns_mov_b32 exec_hi, -1")
    A("s_waitcnt vmcnt(0)")
    g.untag_check([8, 9], 16, "L_pg_ok", "L_pg", 4)
    A("v_add_f32 v8, v8, v9")
    g.red_multi("add", [8], ["row_ror:4", "row_ror:8"])
    g.red_swap("add", [8], [16], [16, 32])
    g.rbf(8, 8)
    A("v_add_f32 v8, v8, v41")
    g.rbf(8, 8)
    A(f"v_mul_f32 v16, {f2u(-math.log2(math.e)):#x}, v8\nv_exp_f32 v16, v16")
    g.nop(1)
    A("v_add_f32 v16, 1.0, v16\nv_rcp_f32 v16, v16")
    g.nop(1)
    A("v_mul_f32 v41, v8, v16")
    g.rbf(41, 41)
    g.stamp(8)
    A("L_sg:")
    for n in range(8): A(f"buffer_load_dword v{8+n}, v2, s[40:43], s{50+n} offen sc1")
    A("s_waitcnt vmcnt(0)")
    g.untag_check(list(range(8, 16)), 16, "L_sg_ok", "L_sg", 2)
    g.stamp(9)
    A("v_add_f32 v8, v8, v9\nv_add_f32 v10, v10, v11\nv_add_f32 v12, v12, v13\nv_add_f32 v14, v14, v15\nv_add_f32 v8, v8, v10\nv_add_f32 v12, v12, v14\nv_add_f32 v8, v8, v12")
    g.red_multi("add", [8], ["row_ror:4", "row_ror:8"])
    g.red_swap("add", [8], [16], [16, 32])
    g.rbf(8, 8)
    A("v_mul_f32 v8, v8, v41")
    g.rbf(8, 8)
    A("v_add_f32 v8, v8, v40\nv_cvt_pk_bf16_f32 v8, v8, v8")
    A("s_mov_b64 exec, 0xf")
    A("buffer_store_short v8, v1, s[36:39], s45 offen")
    A("s_cmp_lg_u32 s2, 0\ns_cbranch_scc1 L_noep")
    A("s_mov_b64 exec, 1\nv_mov_b32 v9, s59")
    A(f"buffer_store_dword v9, v1, s[40:43], 0 offen offset:{EPOCH} sc1")
    A("L_noep:")
    A("s_mov_b64 exec, -1")
    g.stamp(10)
    A("L_fin:")
    if diag:
        g.stamp(13)
        A("s_waitcnt lgkmcnt(0)")
        lo, hi, j, mult = diag
        A("s_mov_b32 s34, 0")
        A(f"s_cmp_lt_u32 s3, {lo}\ns_cbranch_scc1 L_dg\ns_cmp_gt_u32 s3, {hi}\ns_cbranch_scc1 L_dg")
        A(f"s_cmp_eq_u32 s{70+2*j}, 0\ns_cbranch_scc1 L_dg")
        A(f"s_sub_u32 s34, s{70+2*j}, s70\ns_mul_i32 s34, s34, {mult}")
        A("L_dg:")
        A("s_min_u32 s34, s34, 90000\ns_add_u32 s34, s34, 10000")
        A("L_dg2:")
        A("s_memrealtime s[36:37]\ns_waitcnt lgkmcnt(0)\ns_sub_u32 s36, s36, s70\ns_cmp_lt_u32 s36, s34\ns_cbranch_scc1 L_dg2")
    elif stamps:
        g.stamp(13)
        A("s_getreg_b32 s94, hwreg(HW_REG_XCC_ID)\ns_and_b32 s94, s94, 15\ns_add_u32 s94, s94, 1\ns_mov_b32 s95, 0")
        A("s_waitcnt lgkmcnt(0)")
        A(f"s_lshl_b32 s34, s2, 4\ns_add_u32 s34, s34, s3\ns_lshl_b32 s34, s34, 7\ns_add_u32 s34, s34, {STAMP}")
        A("v_mov_b32 v1, 0\ns_mov_b64 exec, 1")
        for j in range(0, 14, 2):
            for q in range(4): A(f"v_mov_b32 v{8+q}, s{70+2*j+q}")
            A(f"buffer_store_dwordx4 v[8:11], v1, s[40:43], s34 offen offset:{j*8}")
            A("s_nop 1")
    A("L_end:")
    A("s_endpgm")
    return wrap("\n".join(g.L) + "\n", 256, 704, LDS_BYTES, 168)

if __name__ == "__main__":
    open("k2.s", "w").write(gen())
    open("k2_st.s", "w").write(gen(stamps=True))
    open("k2_plain.s", "w").write(gen(nt="", wnt=""))
    open("k2_d4.s", "w").write(gen(D=4))
    open("k2_d4_st.s", "w").write(gen(D=4, stamps=True))
```

```python
import sys, struct, math
from common import *

EPOCH = 0
QBUF = 0x10000
UBUF = 0x40000
MLBUF = 0x50000
OBUF = 0x80000
SBUF = 0x100000
MBUF = 0x180000
STAMP = 0x8000000
L_Q = 131072
L_ML = L_Q + 1024
L_F = L_ML + 256
L_X = L_F + 128
LDS_BYTES = L_X + 4096
LOG2E = 0x3fb8aa3b
SCALE = 0x3db504f3
f2u = lambda x: struct.unpack("<I", struct.pack("<f", x))[0]
def mask(f):
    return sum(1 << l for l in range(64) if f(l))

X1 = "quad_perm:[1,0,3,2]"; X2 = "quad_perm:[2,3,0,1]"; HM = "row_half_mirror"; RM = "row_mirror"

class G:
    def __init__(self, stamps):
        self.L = []; self.stamps = stamps
    def A(self, s):
        for l in s.split("\n"):
            l = l.strip()
            self.L.append(l if l.endswith(":") else "  " + l)
    def nop(self, n):
        while n > 0:
            k = min(n, 16); self.A(f"s_nop {k-1}"); n -= k
    def stamp(self, j):
        if self.stamps: self.A(f"s_memrealtime s[{70+2*j}:{71+2*j}]")
    def srd(self, d, lo, size):
        self.A(f"s_mov_b32 s{d}, s{lo}\ns_mov_b32 s{d+1}, s{lo+1}\ns_mov_b32 s{d+2}, {size}\ns_mov_b32 s{d+3}, 0x20000")
    def smask(self, s, m):
        self.A(f"s_mov_b32 s{s}, {m & 0xffffffff:#x}\ns_mov_b32 s{s+1}, {m >> 32:#x}")
    def red_multi(self, op, regs, ctls):
        for c in ctls:
            if len(regs) < 3: self.nop(3 - len(regs))
            for v in regs: self.A(f"v_{op}_f32_dpp v{v}, v{v}, v{v} {c} row_mask:0xf bank_mask:0xf")
    def red_swap(self, op, regs, tmps, which):
        for w in which:
            for v, t in zip(regs, tmps): self.A(f"v_mov_b32 v{t}, v{v}")
            self.nop(max(0, 3 - len(regs)))
            for v, t in zip(regs, tmps): self.A(f"v_permlane{w}_swap_b32 v{v}, v{t}")
            if len(regs) < 2: self.nop(1)
            for v, t in zip(regs, tmps): self.A(f"v_{op}_f32 v{v}, v{v}, v{t}")
    def rbf(self, d, s):
        self.A(f"v_cvt_pk_bf16_f32 v{d}, v{s}, v{s}\nv_lshlrev_b32 v{d}, 16, v{d}")
    def rbf2(self, d0, d1, s0, s1):
        self.A(f"v_cvt_pk_bf16_f32 v{d1}, v{s0}, v{s1}\nv_lshlrev_b32 v{d0}, 16, v{d1}\nv_and_b32 v{d1}, 0xffff0000, v{d1}")
    def tag(self, d, s):
        self.A(f"v_and_or_b32 v{d}, v{s}, s63, v5")
    def untag_check(self, regs, t, ok, loop, sleep):
        for r in regs: self.A(f"v_xor_b32 v{r}, v5, v{r}")
        if len(regs) == 2:
            self.A(f"v_or_b32 v{t}, v{regs[0]}, v{regs[1]}")
        else:
            self.A(f"v_or3_b32 v{t}, v{regs[0]}, v{regs[1]}, v{regs[2]}")
            rest = regs[3:]
            while len(rest) >= 2:
                self.A(f"v_or3_b32 v{t}, v{t}, v{rest[0]}, v{rest[1]}"); rest = rest[2:]
            if rest: self.A(f"v_or_b32 v{t}, v{t}, v{rest[0]}")
        self.A(f"v_and_b32 v{t}, 0xfff, v{t}\nv_cmp_ne_u32 vcc, 0, v{t}\ns_wqm_b64 exec, vcc\ns_cbranch_scc0 {ok}")
        self.A(f"s_cmp_eq_u32 s62, 0\ns_cbranch_scc1 {ok}\ns_sub_u32 s62, s62, 1\ns_sleep {sleep}\ns_branch {loop}")
        self.A(f"{ok}:\ns_mov_b64 exec, -1")
    def perms(self, dst, src, kp):
        a = src + 8 * kp; b = a + 4
        for dp in range(4):
            self.A(f"v_perm_b32 v{dst+8*dp+kp}, v{b+dp}, v{a+dp}, s60")
            self.A(f"v_perm_b32 v{dst+8*dp+4+kp}, v{b+dp}, v{a+dp}, s61")
    def mfma8(self, d, a, b, first):
        for e in range(8):
            c = "0" if first else f"v[{d+4*e}:{d+4*e+3}]"
            self.A(f"v_mfma_f32_16x16x32_bf16 v[{d+4*e}:{d+4*e+3}], v[{a}:{a+3}], v[{b+4*e}:{b+4*e+3}], {c}")
    def get_tau(self):
        self.A("s_add_u32 s59, s59, 1\ns_and_b32 s58, s59, 0xfff\nv_mov_b32 v5, s58")

def layernorm(g, f, t):
    A = g.A
    s, s2, mean, var = t, t + 1, t + 2, t + 3
    A(f"v_add_f32 v{s}, v{f}, v{f+1}\nv_add_f32 v{s2}, v{f+2}, v{f+3}")
    for i in range(4, 16, 2): A(f"v_add_f32 v{s}, v{s}, v{f+i}\nv_add_f32 v{s2}, v{s2}, v{f+i+1}")
    A(f"v_add_f32 v{s}, v{s}, v{s2}")
    g.red_multi("add", [s], [X1, X2, HM])
    g.red_swap("add", [s], [s2], [16, 32])
    A(f"v_mul_f32 v{mean}, 0x3b000000, v{s}")
    A(f"v_sub_f32 v{s2}, v{f}, v{mean}\nv_mul_f32 v{var}, v{s2}, v{s2}")
    for i in range(1, 16):
        A(f"v_sub_f32 v{s2}, v{f+i}, v{mean}\nv_fmac_f32 v{var}, v{s2}, v{s2}")
    g.red_multi("add", [var], [X1, X2, HM])
    g.red_swap("add", [var], [s2], [16, 32])
    A(f"v_mul_f32 v{var}, 0x3b000000, v{var}")
    g.rbf2(mean, var, mean, var)
    A(f"v_add_f32 v{var}, 0x3727c5ac, v{var}")
    g.rbf(var, var)
    A(f"v_sqrt_f32 v{var}, v{var}")
    for i in range(16): A(f"v_sub_f32 v{f+i}, v{f+i}, v{mean}")
    g.rbf(var, var)
    A(f"v_rcp_f32 v{s}, v{var}")
    for i in range(0, 16, 2): g.rbf2(f + i, f + i + 1, f + i, f + i + 1)
    for i in range(16):
        A(f"v_mul_f32 v{s2}, v{f+i}, v{s}")
        A(f"v_fma_f32 v{f+i}, -v{s2}, v{var}, v{f+i}")
        A(f"v_fma_f32 v{f+i}, v{f+i}, v{s}, v{s2}")
    for i in range(0, 16, 2): g.rbf2(f + i, f + i + 1, f + i, f + i + 1)


def lds_check(g, regs, t, ok, loop, sleep):
    A = g.A
    A(f"v_max3_u32 v{t}, v{regs[0]}, v{regs[1]}, v{regs[2]}")
    rest = regs[3:]
    while len(rest) >= 2:
        A(f"v_max3_u32 v{t}, v{t}, v{rest[0]}, v{rest[1]}"); rest = rest[2:]
    if rest: A(f"v_max_u32 v{t}, v{t}, v{rest[0]}")
    A(f"v_cmp_eq_u32 vcc, -1, v{t}\ns_cmp_eq_u64 vcc, 0\ns_cbranch_scc1 {ok}")
    A(f"s_cmp_eq_u32 s62, 0\ns_cbranch_scc1 {ok}\ns_sub_u32 s62, s62, 1\ns_sleep {sleep}\ns_branch {loop}")
    A(f"{ok}:")

def gen(stamps=False, nt="nt", wnt="nt", D=3, D0=1, DV=0, diag=None):
    if diag: stamps = True
    g = G(stamps); A = g.A
    if stamps:
        for j in range(14): A(f"s_mov_b64 s[{70+2*j}:{71+2*j}], 0")
    g.stamp(0)
    A("s_cmp_ge_u32 s2, 256\ns_cbranch_scc1 L_end")
    A("s_load_dwordx16 s[4:19], s[0:1], 0")
    A("s_load_dwordx8 s[20:27], s[0:1], 64")
    A("s_load_dwordx2 s[28:29], s[0:1], 96")
    A("v_lshrrev_b32 v1, 6, v0\nv_and_b32 v0, 63, v0")
    A("v_readfirstlane_b32 s3, v1")
    A("s_and_b32 s30, s2, 7\ns_lshr_b32 s31, s2, 3")
    A("s_mov_b32 s60, 0x05040100\ns_mov_b32 s61, 0x07060302\ns_mov_b32 s62, 0x40000\ns_mov_b32 s63, 0xfffff000")
    A("v_lshrrev_b32 v6, 4, v0\nv_and_b32 v7, 15, v0")
    A("s_cmp_ge_u32 s3, 8\ns_cbranch_scc1 L_svc")
    A("s_lshr_b32 s44, s31, 4\ns_lshl_b32 s44, s44, 3\ns_add_u32 s44, s44, s30\ns_lshl_b32 s44, s44, 21")
    A("s_and_b32 s45, s31, 15\ns_lshl_b32 s45, s45, 17\ns_add_u32 s44, s44, s45")
    A("s_lshl_b32 s45, s3, 10\ns_add_u32 s44, s44, s45\ns_lshl_b32 s45, s3, 14")
    A("v_lshlrev_b32 v1, 2, v6\nv_xor_b32 v1, v1, v7\nv_lshlrev_b32 v1, 4, v1\nv_lshl_add_u32 v1, v6, 8, v1")
    A("v_xor_b32 v2, 16, v1\nv_xor_b32 v3, 32, v1\nv_xor_b32 v4, 48, v1\nv_lshlrev_b32 v31, 4, v0")
    A("s_mov_b32 m0, s45\ns_mov_b32 s46, s44\ns_mov_b32 s34, 0x2000000\ns_mov_b32 s35, 0x20000")
    A("s_setprio 2")
    A("s_waitcnt lgkmcnt(0)")
    g.stamp(1)
    A("s_mov_b32 s32, s6\ns_mov_b32 s33, s7")
    for p in range(16):
        if p == D0: A(f"s_waitcnt vmcnt({D0-1})")
        elif D and p >= D0 + D - (D0 - 1) - 0 and p > D0: A(f"s_waitcnt vmcnt({D-1})")
        A(f"buffer_load_dwordx4 v{1+p%4}, s[32:35], s46 offen {nt} lds")
        if p < 15: A(f"s_add_u32 m0, m0, 1024\ns_add_u32 s46, s46, 8192")
        if p == D0 - 1:
            A(f"s_load_dword s59, s[28:29], {EPOCH}")
            g.srd(36, 8, "0x2000000")
            g.srd(40, 28, "0x10000000")
            A("s_barrier")
    g.stamp(2)
    A("s_setprio 0")
    for p in range(16):
        if DV: A(f"s_waitcnt vmcnt({DV-1})")
        A(f"buffer_load_dwordx4 v[{64+4*p}:{67+4*p}], v31, s[36:39], s44 offen {nt}")
        if p < 15: A("s_add_u32 s44, s44, 8192")
    A("s_setprio 1")
    g.stamp(3)
    A("v_and_b32 v1, 3, v7\nv_lshlrev_b32 v1, 2, v1\nv_lshrrev_b32 v2, 2, v7\nv_add_u32 v1, v1, v2\nv_lshlrev_b32 v1, 8, v1")
    A("v_xor_b32 v2, v6, v7\nv_lshl_add_u32 v1, v2, 4, v1\nv_add_u32 v1, s45, v1")
    A("v_xor_b32 v2, 64, v1\nv_xor_b32 v3, 0x80, v1\nv_xor_b32 v4, 0xc0, v1")
    A(f"v_and_b32 v30, 3, v7\nv_lshlrev_b32 v29, 8, v30\nv_lshl_add_u32 v29, v6, 4, v29\nv_add_u32 v29, {L_Q}, v29")
    KF = [32, 48, 128, 144]; QF = [16, 20, 24, 164]; S = [8, 12, 160, 32]
    A("s_waitcnt vmcnt(16)")
    for T in range(2):
        for j in range(4): A(f"ds_read_b128 v[{KF[T]+4*j}:{KF[T]+4*j+3}], v{1+j} offset:{T*4096}")
    A("L_bq:")
    for j in range(4): A(f"ds_read_b128 v[{QF[j]}:{QF[j]+3}], v29 offset:{j*64}")
    A("s_waitcnt lgkmcnt(0)")
    lds_check(g, [QF[j] + r for j in range(4) for r in (0, 3)], 28, "L_bq_ok", "L_bq", 4)
    g.stamp(4)
    for T in range(2, 4):
        for j in range(4): A(f"ds_read_b128 v[{KF[T]+4*j}:{KF[T]+4*j+3}], v{1+j} offset:{T*4096}")
    g.get_tau()
    for T in range(4):
        if T >= 2: A(f"s_waitcnt lgkmcnt({0 if stamps else [8,8,4,0][T]})")
        for j in range(4):
            c = "0" if j == 0 else f"v[{S[T]}:{S[T]+3}]"
            A(f"v_mfma_f32_16x16x32_bf16 v[{S[T]}:{S[T]+3}], v[{KF[T]+4*j}:{KF[T]+4*j+3}], v[{QF[j]}:{QF[j]+3}], {c}")
    A(f"s_mov_b32 s47, {SCALE}\ns_mov_b32 s48, {LOG2E}")
    sv = [S[T] + r for T in range(4) for r in range(4)]
    for i in range(0, 16, 2):
        a, b = sv[i], sv[i + 1]
        g.rbf2(a, b, a, b)
        A(f"v_mul_f32 v{a}, s47, v{a}\nv_mul_f32 v{b}, s47, v{b}")
        g.rbf2(a, b, a, b)
    A(f"v_max3_f32 v24, v{sv[0]}, v{sv[1]}, v{sv[2]}")
    for i in range(3, 15, 2): A(f"v_max3_f32 v24, v24, v{sv[i]}, v{sv[i+1]}")
    A(f"v_max_f32 v24, v24, v{sv[15]}")
    g.red_swap("max", [24], [25], [16, 32])
    A("v_mul_f32 v26, s48, v24")
    for v in sv: A(f"v_fma_f32 v{v}, v{v}, s48, -v26")
    for v in sv: A(f"v_exp_f32 v{v}, v{v}")
    A(f"v_add_f32 v25, v{sv[0]}, v{sv[1]}\nv_add_f32 v26, v{sv[2]}, v{sv[3]}")
    for i in range(4, 16, 2): A(f"v_add_f32 v25, v25, v{sv[i]}\nv_add_f32 v26, v26, v{sv[i+1]}")
    A("v_add_f32 v25, v25, v26")
    for i in range(8): A(f"v_cvt_pk_bf16_f32 v{16+i}, v{sv[2*i]}, v{sv[2*i+1]}")
    g.red_swap("add", [25], [26], [16, 32])
    A(f"s_lshl_b32 s49, s3, 3\ns_add_u32 s49, s49, {L_ML}\nv_lshl_add_u32 v27, v30, 6, s49\nv_min_u32 v25, -2, v25")
    A("ds_write_b64 v27, v[24:25]")
    g.stamp(5)
    A("v_lshlrev_b32 v1, 5, v7\nv_add_u32 v1, s45, v1\nv_add_u32 v2, 1024, v1")
    A("s_lshl_b32 s49, s3, 8\nv_lshlrev_b32 v3, 2, v0\nv_add_u32 v3, s49, v3\nv_add_u32 v4, 0x10000, v3")
    A(f"s_lshl_b32 s50, s30, 5\ns_add_u32 s50, s50, s31\ns_lshl_b32 s50, s50, 11\ns_add_u32 s50, s50, {OBUF}")
    A(f"s_lshr_b32 s49, s3, 1\ns_lshl_b32 s49, s49, 5\ns_add_u32 s49, s49, {L_F}\nv_mov_b32 v28, s49")
    for T in range(2):
        for kp in range(4):
            A(f"s_waitcnt vmcnt({14 - 8*T - 2*kp})")
            if T == 1 and kp == 3:
                g.stamp(6); A("s_setprio 3")
            g.perms(128, 64 + 32 * T, kp)
        g.nop(2); g.mfma8(32, 16 + 4 * T, 128, T == 0)
    A("s_mov_b64 exec, 0xffff")
    g.nop(1)
    for e in range(0, 8, 2):
        for r in range(4):
            A(f"ds_write2_b32 v{1 + r//2}, v{32+4*e+r}, v{32+4*(e+1)+r} offset0:{(r%2)*128+e} offset1:{(r%2)*128+e+1}")
    A("s_mov_b64 exec, -1")
    A("s_waitcnt lgkmcnt(0)\ns_barrier")
    g.stamp(7)
    A("ds_read2st64_b32 v[8:9], v3 offset0:0 offset1:64\nds_read2st64_b32 v[10:11], v3 offset0:128 offset1:192")
    A("ds_read_b128 v[16:19], v28")
    A("ds_read2st64_b32 v[12:13], v4 offset0:0 offset1:64\nds_read2st64_b32 v[14:15], v4 offset0:128 offset1:192")
    A("ds_read_b128 v[20:23], v28 offset:16")
    A(f"s_waitcnt lgkmcnt({0 if stamps else 3})")
    A("v_mul_f32 v8, v8, v16\nv_mul_f32 v9, v9, v17\nv_fmac_f32 v8, v10, v18\nv_fmac_f32 v9, v11, v19")
    A("s_waitcnt lgkmcnt(0)")
    A("v_fmac_f32 v8, v12, v20\nv_fmac_f32 v9, v13, v21\nv_fmac_f32 v8, v14, v22\nv_fmac_f32 v9, v15, v23\nv_add_f32 v8, v8, v9")
    g.tag(8, 8)
    A("buffer_store_dword v8, v3, s[40:43], s50 offen sc1")
    if diag: A("s_barrier")
    A("s_branch L_fin")

    A("L_svc:")
    A("s_setprio 3")
    A("v_and_b32 v2, 7, v0")
    A("s_cmp_eq_u32 s3, 10\ns_cbranch_scc1 L_w10")
    A("s_mul_i32 s48, s30, 28\ns_add_u32 s48, s48, s31\ns_lshr_b32 s49, s48, 3\ns_and_b32 s48, s48, 7")
    A("s_mov_b32 s39, 0x20000")
    A("s_cmp_eq_u32 s3, 9\ns_cbranch_scc1 L_w9")
    A("s_lshr_b32 s51, s31, 3\ns_and_b32 s47, s31, 7")
    A("s_mov_b32 s45, 8192\ns_lshl_b32 s46, s30, 10\ns_lshl_b32 s50, s47, 7\ns_add_u32 s46, s46, s50\ns_lshl_b32 s50, s51, 20\ns_add_u32 s46, s46, s50")
    A(f"s_lshl_b32 s53, s30, 14\ns_lshl_b32 s50, s51, 11\ns_add_u32 s53, s53, s50\ns_lshl_b32 s50, s47, 7\ns_add_u32 s53, s53, s50\ns_add_u32 s53, s53, {QBUF}")
    A(f"s_add_u32 s54, s53, 1024\ns_mov_b32 s55, 13\ns_mov_b32 s56, 4\ns_mov_b32 s57, {L_X}\ns_mov_b32 s38, 0x400000")
    A("s_waitcnt lgkmcnt(0)\ns_mov_b32 s36, s10\ns_mov_b32 s37, s11")
    A("s_branch L_gemv")
    A("L_w9:")
    A("s_cmp_ge_u32 s31, 28\ns_cbranch_scc1 L_nojob")
    A("s_cmp_ge_u32 s48, 4\ns_cbranch_scc1 L_m2")
    A(f"s_mov_b32 s51, s48\ns_mov_b32 s45, 3584\ns_lshl_b32 s46, s49, 7\ns_mul_i32 s50, s48, {128*3584}\ns_add_u32 s46, s46, s50")
    A(f"s_lshl_b32 s53, s49, 11\ns_lshl_b32 s50, s48, 9\ns_add_u32 s53, s53, s50\ns_add_u32 s53, s53, {UBUF}")
    A(f"s_add_u32 s54, s53, 16\ns_mov_b32 s55, 8\ns_mov_b32 s56, 5\ns_mov_b32 s57, {L_X+2048}\ns_mov_b32 s38, {512*1792*2}")
    A("s_waitcnt lgkmcnt(0)\ns_mov_b32 s36, s16\ns_mov_b32 s37, s17")
    A("L_gemv:")
    g.stamp(1)
    A("v_lshrrev_b32 v3, 3, v0\ns_lshl_b32 s47, s45, 3\nv_mul_lo_u32 v3, v3, s47\nv_lshl_add_u32 v3, v2, 4, v3")
    A("s_lshl_b32 s50, s45, 6\ns_add_u32 s50, s50, s46")
    for T in range(2):
        for kk in range(8):
            sr = 46 if T == 0 else 50
            A(f"buffer_load_dwordx4 v[{64+32*T+4*kk}:{67+32*T+4*kk}], v3, s[36:39], s{sr} offen {wnt}")
            if kk < 7: A(f"s_add_u32 s{sr}, s{sr}, s45")
    g.stamp(11)
    A("s_barrier")
    A(f"s_load_dword s59, s[28:29], {EPOCH}")
    g.srd(40, 28, "0x10000000")
    A("s_lshl_b32 s50, s51, 8\ns_add_u32 s47, s57, s50")
    A("v_lshrrev_b32 v3, 3, v7\nv_lshlrev_b32 v3, 10, v3\nv_lshl_add_u32 v3, v6, 5, v3\nv_and_b32 v4, 1, v0\nv_lshl_add_u32 v3, v4, 4, v3\nv_add_u32 v3, s47, v3")
    A("v_lshrrev_b32 v4, 5, v0\nv_lshlrev_b32 v4, s55, v4\nv_lshlrev_b32 v2, s56, v2\nv_add_u32 v4, v4, v2")
    A("s_waitcnt vmcnt(8)")
    for kp in range(4): g.perms(128, 64, kp)
    A("s_waitcnt vmcnt(0)")
    g.stamp(2)
    for kp in range(4): g.perms(64, 96, kp)
    A("L_xa:")
    A("ds_read_b128 v[8:11], v3\nds_read_b128 v[12:15], v3 offset:128\ns_waitcnt lgkmcnt(0)")
    lds_check(g, [8, 11, 12, 15], 16, "L_xa_ok", "L_xa", 1)
    g.stamp(3)
    g.get_tau()
    g.mfma8(32, 8, 128, True)
    g.mfma8(32, 12, 64, False)
    g.nop(2)
    for e in range(8):
        A(f"v_add_f32_dpp v{16+e}, v{33+4*e}, v{32+4*e} row_ror:8 row_mask:0xf bank_mask:0xf")
    for e in range(8): g.tag(16 + e, 16 + e)
    A("s_mov_b32 exec_lo, 0xff\ns_mov_b32 exec_hi, 0xff")
    A("buffer_store_dwordx4 v[16:19], v4, s[40:43], s53 offen sc1\nbuffer_store_dwordx4 v[20:23], v4, s[40:43], s54 offen sc1")
    A("s_mov_b64 exec, -1")
    g.stamp(4)
    A("s_mov_b32 s52, 0")
    A("s_cmp_lg_u32 s3, 8\ns_cbranch_scc1 L_wo")
    A(f"s_lshl_b32 s47, s30, 1\ns_lshr_b32 s48, s31, 4\ns_add_u32 s47, s47, s48\ns_lshl_b32 s49, s47, 13\ns_add_u32 s49, s49, {QBUF}\ns_add_u32 s50, s49, 4096")
    A(f"v_lshlrev_b32 v2, 4, v0\nv_add_u32 v3, {L_Q}, v2")
    A("s_waitcnt vmcnt(0)")
    g.stamp(5)
    A("L_q:")
    for i in range(8):
        A(f"buffer_load_dwordx4 v[{8+4*i}:{11+4*i}], v2, s[40:43], s{49 + i//4} offen offset:{(i%4)*1024} sc1")
    A("s_waitcnt vmcnt(0)")
    g.untag_check(list(range(8, 40)), 42, "L_q_ok", "L_q", 4)
    g.stamp(6)
    for i in range(8): A(f"v_add_f32 v{8+i}, v{8+i}, v{16+i}\nv_add_f32 v{24+i}, v{24+i}, v{32+i}")
    for i in range(8): A(f"v_add_f32 v{8+i}, v{8+i}, v{24+i}")
    for i in range(4): A(f"v_cvt_pk_bf16_f32 v{16+i}, v{8+2*i}, v{9+2*i}\nv_min_u32 v{16+i}, -2, v{16+i}")
    A("ds_write_b128 v3, v[16:19]")
    A("s_branch L_wo")
    A("L_nojob:")
    A("s_waitcnt lgkmcnt(0)\ns_barrier")
    A(f"s_load_dword s59, s[28:29], {EPOCH}")
    g.srd(40, 28, "0x10000000")
    A("s_mov_b32 s52, 0\ns_waitcnt lgkmcnt(0)")
    g.get_tau()
    A("s_branch L_wo")
    A("L_m2:")
    A("s_sub_u32 s48, s48, 4\ns_lshl_b32 s46, s49, 16\ns_lshl_b32 s47, s48, 8\ns_add_u32 s46, s46, s47")
    A("v_lshlrev_b32 v2, 12, v6\nv_lshl_add_u32 v2, v7, 4, v2")
    A(f"s_mov_b32 s38, {512*1792*2}\ns_waitcnt lgkmcnt(0)\ns_mov_b32 s36, s20\ns_mov_b32 s37, s21")
    for q in range(4):
        for kk in range(4):
            r = 64 + 16 * q + 4 * kk
            A(f"buffer_load_dwordx4 v[{r}:{r+3}], v2, s[36:39], s46 offen offset:{kk*1024} {wnt}")
        if q < 3: A("s_add_u32 s46, s46, 16384")
    A("s_barrier")
    A(f"s_load_dword s59, s[28:29], {EPOCH}")
    g.srd(40, 28, "0x10000000")
    g.srd(36, 18, "3584")
    A("v_bfe_u32 v3, v0, 2, 1\nv_lshlrev_b32 v3, 5, v3\nv_lshl_add_u32 v3, v6, 2, v3")
    A("v_lshlrev_b32 v4, 1, v3\ns_lshl_b32 s47, s49, 7")
    A("buffer_load_dwordx2 v[24:25], v4, s[36:39], s47 offen\nbuffer_load_dwordx2 v[26:27], v4, s[36:39], s47 offen offset:32")
    A("v_and_b32 v4, 3, v0\nv_lshlrev_b32 v4, 9, v4\nv_lshl_add_u32 v3, v3, 2, v4\nv_bfe_u32 v4, v0, 3, 1\nv_lshl_add_u32 v3, v4, 8, v3")
    A(f"s_lshl_b32 s47, s49, 11\ns_add_u32 s47, s47, {UBUF}")
    A("s_waitcnt vmcnt(0) lgkmcnt(0)")
    g.get_tau()
    for kp in range(4): g.perms(128, 64, kp)
    for kp in range(4): g.perms(32, 96, kp)
    A(f"v_mov_b32 v4, {L_Q}")
    A("L_uw:")
    A("ds_read_b128 v[8:11], v4\ns_waitcnt lgkmcnt(0)")
    lds_check(g, [8, 9, 10, 11], 16, "L_uw_ok", "L_uw", 8)
    g.stamp(2)
    A("L_u:")
    A("buffer_load_dwordx4 v[8:11], v3, s[40:43], s47 offen sc1\nbuffer_load_dwordx4 v[12:15], v3, s[40:43], s47 offen offset:64 sc1")
    A("s_waitcnt vmcnt(0)")
    g.untag_check(list(range(8, 16)), 16, "L_u_ok", "L_u", 8)
    g.stamp(3)
    A("s_setprio 0")
    g.red_multi("add", list(range(8, 16)), [X1, X2])
    for i in range(4):
        g.rbf2(8 + 2 * i, 9 + 2 * i, 8 + 2 * i, 9 + 2 * i)
        A(f"v_lshlrev_b32 v16, 16, v{24+i}\nv_and_b32 v17, 0xffff0000, v{24+i}")
        A(f"v_add_f32 v{8+2*i}, v{8+2*i}, v16\nv_add_f32 v{9+2*i}, v{9+2*i}, v17")
        g.rbf2(8 + 2 * i, 9 + 2 * i, 8 + 2 * i, 9 + 2 * i)
    c1 = -2.0 * math.sqrt(2.0 / math.pi) * math.log2(math.e)
    A(f"s_mov_b32 s50, {f2u(c1):#x}\ns_mov_b32 s51, {f2u(0.044715):#x}")
    for i in range(8):
        A(f"v_mul_f32 v{16+i}, v{8+i}, v{8+i}\nv_mul_f32 v{16+i}, s51, v{16+i}\nv_fma_f32 v{16+i}, v{16+i}, v{8+i}, v{8+i}\nv_mul_f32 v{16+i}, s50, v{16+i}")
    for i in range(8): A(f"v_exp_f32 v{16+i}, v{16+i}")
    for i in range(8): A(f"v_add_f32 v{16+i}, 1.0, v{16+i}")
    for i in range(8): A(f"v_rcp_f32 v{16+i}, v{16+i}")
    for i in range(8): A(f"v_mul_f32 v{8+i}, v{8+i}, v{16+i}")
    for i in range(4): A(f"v_cvt_pk_bf16_f32 v{16+i}, v{8+2*i}, v{9+2*i}")
    g.smask(64, mask(lambda l: (l >> 2) & 1))
    for i in range(4): A(f"v_mov_b32_dpp v{20+i}, v{16+i} {HM} row_mask:0xf bank_mask:0xf")
    for i in range(4): A(f"v_cndmask_b32 v{8+i}, v{16+i}, v{20+i}, s[64:65]\nv_cndmask_b32 v{12+i}, v{20+i}, v{16+i}, s[64:65]")
    g.nop(2)
    g.mfma8(64, 8, 128, True)
    g.mfma8(64, 12, 32, False)
    g.smask(64, mask(lambda l: (l >> 4) & 1))
    g.nop(3)
    for i in range(4):
        A(f"v_cndmask_b32 v{160+i}, v{64+4*i}, v{80+4*i}, s[64:65]")
        g.tag(160 + i, 160 + i)
    A(f"s_lshl_b32 s57, s49, 12\ns_lshl_b32 s47, s48, 9\ns_add_u32 s57, s57, s47\ns_add_u32 s57, s57, {MBUF}\ns_mov_b32 s52, 1")
    g.stamp(4)
    A("L_wo:")
    A("s_setprio 0")
    g.srd(36, 12, "0x400000")
    A("s_lshr_b32 s44, s31, 1")
    A("s_lshl_b32 s46, s30, 19\ns_lshl_b32 s47, s44, 15\ns_add_u32 s46, s46, s47")
    A("s_and_b32 s47, s31, 1\ns_lshl_b32 s47, s47, 1\ns_add_u32 s47, s47, s3\ns_sub_u32 s47, s47, 8")
    A("s_lshl_b32 s48, s47, 8\ns_add_u32 s46, s46, s48\ns_add_u32 s48, s46, 16384")
    A("v_lshlrev_b32 v2, 12, v6\nv_lshl_add_u32 v2, v7, 4, v2")
    for kk in range(8):
        A(f"buffer_load_dwordx4 v[{64+4*kk}:{67+4*kk}], v2, s[36:39], s{46 if kk < 4 else 48} offen offset:{(kk%4)*1024} {wnt}")
    A("v_lshrrev_b32 v1, 3, v7\nv_and_b32 v2, 7, v0\nv_lshl_add_u32 v1, v1, 4, v2\nv_lshlrev_b32 v2, 11, v1\nv_lshl_add_u32 v2, v6, 4, v2\nv_lshlrev_b32 v1, 7, v1")
    A(f"s_lshl_b32 s50, s30, 16\ns_lshl_b32 s51, s44, 7\ns_add_u32 s50, s50, s51\ns_add_u32 s50, s50, {OBUF}\ns_add_u32 s51, s50, {8*2048}")
    A(f"s_lshl_b32 s53, s30, 12\ns_lshr_b32 s54, s44, 2\ns_lshl_b32 s54, s54, 4\ns_add_u32 s53, s53, s54\ns_add_u32 s53, s53, {MLBUF}")
    A(f"s_lshl_b32 s54, s30, 4\ns_add_u32 s54, s54, s44\ns_lshl_b32 s54, s54, 12\ns_lshl_b32 s55, s47, 9\ns_add_u32 s54, s54, s55\ns_add_u32 s54, s54, {SBUF}")
    A("v_lshrrev_b32 v3, 1, v6\nv_lshlrev_b32 v3, 11, v3\nv_lshl_add_u32 v3, v7, 5, v3\nv_and_b32 v4, 1, v6\nv_lshl_add_u32 v3, v4, 4, v3")
    g.smask(64, mask(lambda l: (l >> 4) & 1))
    A(f"s_mov_b32 s48, {LOG2E}")
    A("s_waitcnt vmcnt(0) lgkmcnt(0)")
    for kp in range(4): g.perms(128, 64, kp)
    g.stamp(7)
    A("s_barrier")
    g.stamp(8)
    A("s_cmp_eq_u32 s52, 0\ns_cbranch_scc1 L_mlg")
    A("buffer_store_dwordx4 v[160:163], v3, s[40:43], s57 offen sc1")
    A("L_mlg:")
    A("buffer_load_dwordx4 v[8:11], v1, s[40:43], s53 offen sc1\nbuffer_load_dwordx4 v[12:15], v1, s[40:43], s53 offen offset:1024 sc1")
    A("s_waitcnt vmcnt(0)")
    g.untag_check(list(range(8, 16)), 28, "L_mlg_ok", "L_mlg", 2)
    A("v_max_f32 v28, v8, v12")
    g.red_multi("max", [28], [X1, X2, HM])
    A("v_mul_f32 v28, s48, v28\nv_fma_f32 v24, v8, s48, -v28\nv_fma_f32 v26, v12, s48, -v28\nv_exp_f32 v24, v24\nv_exp_f32 v26, v26")
    g.nop(1)
    A("v_mul_f32 v25, v9, v24\nv_fmac_f32 v25, v13, v26")
    g.red_multi("add", [25], [X1, X2, HM])
    A("v_rcp_f32 v25, v25")
    g.nop(1)
    A("v_mul_f32 v24, v24, v25\nv_mul_f32 v26, v26, v25")
    A("L_h1:")
    A("buffer_load_dwordx4 v[8:11], v2, s[40:43], s50 offen sc1\nbuffer_load_dwordx4 v[12:15], v2, s[40:43], s50 offen offset:64 sc1")
    A("buffer_load_dwordx4 v[16:19], v2, s[40:43], s51 offen sc1\nbuffer_load_dwordx4 v[20:23], v2, s[40:43], s51 offen offset:64 sc1")
    A("s_waitcnt vmcnt(0)")
    g.untag_check(list(range(8, 24)), 28, "L_h1_ok", "L_h1", 1)
    A("s_setprio 3")
    g.stamp(9)
    for i in range(8): A(f"v_mul_f32 v{8+i}, v{8+i}, v24")
    for i in range(8): A(f"v_fmac_f32 v{8+i}, v{16+i}, v26")
    g.red_multi("add", list(range(8, 16)), [X1, X2, HM])
    for i in range(4): A(f"v_cvt_pk_bf16_f32 v{16+i}, v{8+2*i}, v{9+2*i}")
    g.nop(2)
    g.mfma8(32, 16, 128, True)
    g.nop(5)
    for i in range(4):
        A(f"v_cndmask_b32 v{8+i}, v{32+4*i}, v{48+4*i}, s[64:65]")
        g.tag(8 + i, 8 + i)
    A("buffer_store_dwordx4 v[8:11], v3, s[40:43], s54 offen sc1")
    g.stamp(10)
    A("s_barrier")
    A("s_branch L_fin")

    A("L_w10:")
    A("v_lshrrev_b32 v1, 3, v7\nv_lshlrev_b32 v1, 10, v1\nv_lshl_add_u32 v1, v6, 7, v1\nv_lshl_add_u32 v1, v2, 4, v1")
    A(f"v_mov_b32 v16, -1\nv_mov_b32 v17, -1\nv_mov_b32 v18, -1\nv_mov_b32 v19, -1\nv_lshlrev_b32 v3, 4, v0\nv_add_u32 v3, {L_Q}, v3")
    A("s_mov_b32 s34, 2048\ns_mov_b32 s35, 0x20000")
    for i in range(6): A(f"ds_write_b128 v3, v[16:19] offset:{min(i*1024, LDS_BYTES - L_Q - 1024)}")
    A("s_waitcnt lgkmcnt(0)\ns_mov_b32 s32, s4\ns_mov_b32 s33, s5")
    g.stamp(1)
    A("buffer_load_dwordx4 v[8:11], v1, s[32:35], 0 offen\nbuffer_load_dwordx4 v[12:15], v1, s[32:35], 0 offen offset:512")
    A("s_barrier")
    A(f"s_load_dword s59, s[28:29], {EPOCH}")
    g.srd(40, 28, "0x10000000")
    g.srd(36, 22, "1024")
    A("s_lshl_b32 s44, s30, 2\ns_lshr_b32 s45, s31, 3\ns_add_u32 s44, s44, s45\ns_lshl_b32 s44, s44, 5\ns_and_b32 s45, s31, 7\ns_lshl_b32 s45, s45, 2\ns_add_u32 s44, s44, s45")
    A("s_lshl_b32 s45, s44, 1\ns_and_b32 s46, s45, 1023")
    A(f"v_add_u32 v4, {L_X}, v1\nv_and_b32 v1, 3, v0\nv_lshlrev_b32 v1, 1, v1")
    A("buffer_load_ushort v50, v1, s[32:35], s45 offen\nbuffer_load_ushort v51, v1, s[36:39], s46 offen")
    g.srd(36, 8, "0x2000000")
    A("s_lshr_b32 s47, s31, 4\ns_lshl_b32 s47, s47, 3\ns_add_u32 s47, s47, s30\ns_lshl_b32 s47, s47, 21\ns_and_b32 s48, s31, 15\ns_lshl_b32 s48, s48, 17\ns_add_u32 s47, s47, s48")
    A(f"buffer_load_ushort v52, v1, s[36:39], s47 offen {nt}")
    g.srd(36, 12, "0x400000")
    A(f"s_lshl_b32 s47, s30, 19\nbuffer_load_ushort v53, v1, s[36:39], s47 offen {nt}")
    g.srd(36, 24, "2048")
    A("buffer_load_ushort v54, v1, s[36:39], s45 offen")
    A("s_waitcnt vmcnt(5)")
    g.stamp(2)
    for i in range(8):
        A(f"v_lshlrev_b32 v{32+2*i}, 16, v{8+i}\nv_and_b32 v{33+2*i}, 0xffff0000, v{8+i}")
    A("s_mov_b32 s52, 1")
    A("L_ln_again:")
    layernorm(g, 32, 20)
    for i in range(8): A(f"v_perm_b32 v{8+i}, v{33+2*i}, v{32+2*i}, s61\nv_min_u32 v{8+i}, -2, v{8+i}")
    A("ds_write_b128 v4, v[8:11]\nds_write_b128 v4, v[12:15] offset:512\nv_add_u32 v4, 2048, v4")
    A("s_cmp_eq_u32 s52, 1\ns_mov_b32 s52, 2\ns_cbranch_scc1 L_ln_again")
    g.stamp(3)
    A("s_setprio 1")
    A("s_waitcnt vmcnt(0) lgkmcnt(0)")
    g.get_tau()
    A(f"v_lshl_add_u32 v2, v6, 3, v2\nv_lshlrev_b32 v3, 3, v2\nv_add_u32 v3, {L_ML}, v3\nv_lshlrev_b32 v4, 2, v2\nv_add_u32 v4, {L_F}, v4")
    A(f"s_mov_b32 s48, {LOG2E}")
    A(f"s_lshl_b32 s49, s30, 5\ns_add_u32 s49, s49, s31\ns_lshl_b32 s49, s49, 7\ns_add_u32 s49, s49, {MLBUF}")
    A("v_lshlrev_b32 v20, 4, v6\nv_mov_b32 v18, v5\nv_mov_b32 v19, v5")
    A("v_lshrrev_b32 v2, 2, v0\nv_lshlrev_b32 v2, 12, v2\nv_lshl_add_u32 v2, v1, 1, v2")
    A("v_lshlrev_b32 v50, 16, v50\nv_lshlrev_b32 v51, 16, v51")
    g.smask(64, mask(lambda l: (l & 15) == 0))
    A("L_ml:")
    A("ds_read_b64 v[8:9], v3\ns_waitcnt lgkmcnt(0)")
    A("v_cmp_eq_u32 vcc, -1, v9\ns_cmp_eq_u64 vcc, 0\ns_cbranch_scc1 L_ml_ok")
    A("s_cmp_eq_u32 s62, 0\ns_cbranch_scc1 L_ml_ok\ns_sub_u32 s62, s62, 1\ns_sleep 2\ns_branch L_ml")
    A("L_ml_ok:")
    A("s_setprio 3")
    g.stamp(4)
    A("v_mov_b32 v10, v8")
    g.red_multi("max", [10], [X1, X2, HM])
    A("v_mul_f32 v8, s48, v8\nv_fma_f32 v12, v10, s48, -v8\nv_exp_f32 v12, -v12")
    g.nop(1)
    A("v_mul_f32 v11, v9, v12\nds_write_b32 v4, v12")
    g.red_multi("add", [11], [X1, X2, HM])
    g.tag(16, 10); g.tag(17, 11)
    A("s_mov_b64 exec, s[64:65]")
    A("buffer_store_dwordx4 v[16:19], v20, s[40:43], s49 offen sc1")
    A("s_mov_b64 exec, -1")
    A(f"s_lshl_b32 s47, s44, 2\ns_add_u32 s48, s47, {MBUF}\ns_add_u32 s49, s48, 0x10000")
    for n in range(8): A(f"s_add_u32 s{50+n}, s47, {SBUF + n*0x10000}")
    A("s_waitcnt lgkmcnt(0)")
    A("s_setprio 0")
    g.stamp(6)
    A("s_barrier")
    g.stamp(7)
    A("L_pg:")
    A("v_mov_b32 v9, v5")
    A("buffer_load_dword v8, v2, s[40:43], s48 offen sc1\ns_mov_b32 s64, exec_hi\ns_and_b32 exec_hi, exec_hi, 0xffff\nbuffer_load_dword v9, v2, s[40:43], s49 offen sc1\ns_mov_b32 exec_hi, s64")
    A("s_waitcnt vmcnt(0)")
    g.untag_check([8, 9], 16, "L_pg_ok", "L_pg", 4)
    A("v_add_f32 v8, v8, v9")
    g.red_multi("add", [8], ["row_ror:4", "row_ror:8"])
    g.red_swap("add", [8], [16], [16, 32])
    g.rbf(8, 8)
    A("v_add_f32 v8, v8, v51")
    g.rbf(8, 8)
    A(f"v_mul_f32 v16, {f2u(-math.log2(math.e)):#x}, v8\nv_exp_f32 v16, v16")
    g.nop(1)
    A("v_add_f32 v16, 1.0, v16\nv_rcp_f32 v16, v16")
    g.nop(1)
    A("v_mul_f32 v51, v8, v16")
    g.rbf(51, 51)
    g.stamp(8)
    A("s_setprio 3\ns_barrier")
    g.stamp(11)
    A("L_sg:")
    for n in range(8): A(f"buffer_load_dword v{8+n}, v2, s[40:43], s{50+n} offen sc1")
    A("s_waitcnt vmcnt(0)")
    g.untag_check(list(range(8, 16)), 16, "L_sg_ok", "L_sg", 1)
    g.stamp(9)
    A("v_add_f32 v8, v8, v9\nv_add_f32 v10, v10, v11\nv_add_f32 v12, v12, v13\nv_add_f32 v14, v14, v15\nv_add_f32 v8, v8, v10\nv_add_f32 v12, v12, v14\nv_add_f32 v8, v8, v12")
    g.red_multi("add", [8], ["row_ror:4", "row_ror:8"])
    g.red_swap("add", [8], [16], [16, 32])
    g.rbf(8, 8)
    A("v_mul_f32 v8, v8, v51")
    g.rbf(8, 8)
    A("v_add_f32 v8, v8, v50\nv_cvt_pk_bf16_f32 v8, v8, v8")
    A("s_mov_b64 exec, 0xf")
    A("buffer_store_short v8, v1, s[36:39], s45 offen")
    A("s_cmp_lg_u32 s2, 0\ns_cbranch_scc1 L_noep")
    A("s_mov_b64 exec, 1\nv_mov_b32 v9, s59")
    A(f"buffer_store_dword v9, v1, s[40:43], 0 offen offset:{EPOCH} sc1")
    A("L_noep:")
    A("s_mov_b64 exec, -1")
    g.stamp(10)
    A("L_fin:")
    if diag:
        g.stamp(13)
        A("s_waitcnt lgkmcnt(0)")
        g.srd(36, 26, "256")
        A("L_dg0:")
        A("s_sleep 8\ns_memrealtime s[44:45]\ns_waitcnt lgkmcnt(0)\ns_sub_u32 s44, s44, s70\ns_cmp_lt_u32 s44, 2500\ns_cbranch_scc1 L_dg0")
        A("s_mov_b64 exec, 1\nv_mov_b32 v1, 0")
        for k, (lo, hi, j, op) in enumerate(diag):
            A(f"s_cmp_lt_u32 s3, {lo}\ns_cbranch_scc1 L_dgs{k}\ns_cmp_gt_u32 s3, {hi}\ns_cbranch_scc1 L_dgs{k}")
            A(f"s_cmp_eq_u32 s{70+2*j}, 0\ns_cbranch_scc1 L_dgs{k}")
            if op == "max": A(f"v_mov_b32 v3, s{70+2*j}\nbuffer_atomic_umax v3, v1, s[36:39], 0 offen offset:{4*k} sc1")
            elif op == "min": A(f"s_not_b32 s34, s{70+2*j}\nv_mov_b32 v3, s34\nbuffer_atomic_umax v3, v1, s[36:39], 0 offen offset:{4*k} sc1")
            else: A(f"s_sub_u32 s34, s{70+2*j}, s70\nv_mov_b32 v3, s34\nbuffer_atomic_add v3, v1, s[36:39], 0 offen offset:{4*k} sc1")
            A(f"s_waitcnt vmcnt(0)\nL_dgs{k}:")
    elif stamps:
        g.stamp(13)
        A("s_getreg_b32 s94, hwreg(HW_REG_XCC_ID)\ns_and_b32 s94, s94, 15\ns_add_u32 s94, s94, 1\ns_mov_b32 s95, 0")
        A("s_waitcnt lgkmcnt(0)")
        A(f"s_lshl_b32 s34, s2, 4\ns_add_u32 s34, s34, s3\ns_lshl_b32 s34, s34, 7\ns_add_u32 s34, s34, {STAMP}")
        A("v_mov_b32 v1, 0\ns_mov_b64 exec, 1")
        for j in range(0, 14, 2):
            for q in range(4): A(f"v_mov_b32 v{8+q}, s{70+2*j+q}")
            A(f"buffer_store_dwordx4 v[8:11], v1, s[40:43], s34 offen offset:{j*8}")
            A("s_nop 1")
    A("L_end:")
    A("s_endpgm")
    return wrap("\n".join(g.L) + "\n", 256, 704, LDS_BYTES, 168)

if __name__ == "__main__":
    for nm, kw in (("", {}), ("_d4", dict(D=4)), ("_d0", dict(D=0)), ("_d3v6", dict(D=3, DV=6)), ("_d4v4", dict(D=4, DV=4))):
        open(f"k4{nm}.s", "w").write(gen(**kw))
        open(f"k4{nm}_st.s", "w").write(gen(stamps=True, **kw))

DIAG = [(0, 0, 0, "min"), (0, 0, 0, "max"), (0, 0, 1, "sum"), (10, 10, 1, "sum"), (10, 10, 2, "sum"), (8, 8, 2, "sum"), (8, 8, 4, "max"), (8, 8, 6, "max"),
        (0, 0, 2, "sum"), (7, 7, 2, "sum"), (7, 7, 3, "sum"), (0, 0, 7, "sum"), (0, 7, 6, "max"), (0, 0, 7, "max"), (8, 9, 9, "max"), (10, 10, 10, "max")]
def decode(vals):
    t0 = (~vals[0]) & 0xffffffff
    out = []
    for v, (lo, hi, j, op) in zip(vals, DIAG):
        if op == "min": x = (((~v) & 0xffffffff) - t0) / 100
        elif op == "max": x = (v - t0) / 100
        else: x = v / 100 / 256 / (hi - lo + 1)
        out.append(f"w{lo}-{hi}[{j}]{op}={x:.2f}")
    return " ".join(out)
if __name__ == "__main__" and len(sys.argv) > 1:
    if sys.argv[1] == "diag":
        open("k4_dg.s", "w").write(gen(D=0, diag=DIAG))
    else:
        print(decode(eval(sys.argv[1])))
```
